```python
import torch

def _softmax(x, axis=-1):
    return torch.softmax(x, dim=axis)
def _gelu(x):
    return torch.nn.functional.gelu(x, approximate="tanh")
def _silu(x):
    return torch.nn.functional.silu(x)
def _sigmoid(x):
    return torch.sigmoid(x)
def _layernorm(x, axis=-1, eps=1e-5):
    m = x.mean(dim=axis, keepdim=True)
    v = x.var(dim=axis, keepdim=True, unbiased=False)
    return (x - m) / torch.sqrt(v + eps)
def _scatter_add(tgt, idx, src, axis=0):
    return tgt.clone().index_add_(axis, idx, src)
def _segment_sum(src, seg, n):
    out = torch.zeros((n,) + src.shape[1:], dtype=src.dtype)
    return out.index_add_(0, seg, src)
def _pad(x, pw):
    flat = tuple(v for pair in reversed(pw) for v in pair)
    return torch.nn.functional.pad(x, flat)

kernel_name = 'recurrent_scan__mha_block_cached__glu_gated_geglu__decode'

def setup_inputs():

    _w = (lambda a: (lambda t: t.to(torch.bfloat16) if t.is_floating_point() else t)(torch.as_tensor(a)))
    def _A_setup():
        B, Sq, D = 2, 1, 640
        H, Sk, Dh = 32, 16384, 128
        return {
            "x": _w((lambda *s: torch.randn(*s, dtype=torch.bfloat16) * 0.4)(B, Sq, D)),
            "k_cache": _w((lambda *s: torch.randn(*s, dtype=torch.bfloat16) * 1.6)(B, H, Sk, Dh)),
            "v_cache": _w((lambda *s: torch.randn(*s, dtype=torch.bfloat16) * 1.6)(B, H, Sk, Dh)),
            "wq": _w((lambda *s: torch.randn(*s, dtype=torch.bfloat16) * 1.6)(D, H * Dh) * (D ** -0.5)),
            "wo": _w((lambda *s: torch.randn(*s, dtype=torch.bfloat16) * 1.6)(H * Dh, D) * ((H * Dh) ** -0.5)),
        }
    _A_in = _A_setup()

    def _B_setup():
        B, S, Dm, Df = 2, 1, 640, 1728
        return {
            "x": _w((lambda *s: torch.randn(*s, dtype=torch.bfloat16) * 0.4)(B, S, Dm)),
            "w_gate": _w((lambda *s: torch.randn(*s, dtype=torch.bfloat16) * 1.6)(Dm, Df) * (Dm ** -0.5)),
            "w_up": _w((lambda *s: torch.randn(*s, dtype=torch.bfloat16) * 1.6)(Dm, Df) * (Dm ** -0.5)),
            "w_down": _w((lambda *s: torch.randn(*s, dtype=torch.bfloat16) * 1.6)(Df, Dm) * (Df ** -0.5)),
        }
    _B_in = _B_setup()

    return {
        "A_x": _A_in["x"],
        "A_k_cache": _A_in["k_cache"],
        "A_v_cache": _A_in["v_cache"],
        "A_wq": _A_in["wq"],
        "A_wo": _A_in["wo"],
        "B_x": _B_in["x"],
        "B_w_gate": _B_in["w_gate"],
        "B_w_up": _B_in["w_up"],
        "B_w_down": _B_in["w_down"],
    }

def reference(A_x, A_k_cache, A_v_cache, A_wq, A_wo, B_x, B_w_gate, B_w_up, B_w_down):
    def _A_ref(x, k_cache, v_cache, wq, wo):
        B, Sq, D = x.shape
        H, Dh = 32, 128
        q = (lambda x, *d: x.permute(*d))((x @ wq).reshape(B, Sq, H, Dh), 0, 2, 1, 3)
        scores = torch.einsum("bhqd,bhkd->bhqk", q, k_cache) * (Dh ** -0.5)
        p = _softmax(scores, axis=-1)
        o = torch.einsum("bhqk,bhkd->bhqd", p, v_cache)
        return (lambda x, *d: x.permute(*d))(o, 0, 2, 1, 3).reshape(B, Sq, H * Dh) @ wo

    def _B_ref(x, w_gate, w_up, w_down):
        g = torch.einsum("bsd,df->bsf", x, w_gate)
        u = torch.einsum("bsd,df->bsf", x, w_up)
        h = _gelu(g) * u
        return torch.einsum("bsf,fd->bsd", h, w_down)

    x = A_x
    xn = _layernorm(x, axis=-1)
    s = _A_ref(xn, A_k_cache, A_v_cache, A_wq, A_wo)
    g = _silu(_B_ref(xn, B_w_gate, B_w_up, B_w_down))
    return x + s * g
```

```python
import re
TRANS = ("v_exp_f32", "v_log_f32", "v_rcp_f32", "v_rsq_f32", "v_sqrt_f32", "v_sin_f32", "v_cos_f32")
def regs(tok):
    tok = tok.strip()
    neg = tok.lstrip("-").strip("|")
    m = re.fullmatch(r"([vsa])\[(\d+):(\d+)\]", neg)
    if m: return [(m.group(1), i) for i in range(int(m.group(2)), int(m.group(3)) + 1)]
    m = re.fullmatch(r"([vsa])(\d+)", neg)
    if m: return [(m.group(1), int(m.group(2)))]
    if neg == "vcc": return [("s", 106), ("s", 107)]
    if neg == "exec": return [("s", 126), ("s", 127)]
    if neg == "m0": return [("s", 124)]
    return []
class Ins:
    def __init__(s, text):
        s.text = text
        t = text.split(";")[0].strip()
        p = t.split(None, 1)
        s.op = p[0]
        rest = p[1] if len(p) > 1 else ""
        ops = [o.strip() for o in re.split(r",(?![^\[]*\])", rest)] if rest else []
        s.mods = ""
        if ops:
            last = ops[-1].split(None, 1)
            ops[-1] = last[0]
            if len(last) > 1: s.mods = last[1]
        s.ops = ops
        op = s.op
        s.valu = op.startswith("v_") and not op.startswith("v_mfma")
        s.mfma = op.startswith("v_mfma")
        s.vmem = op.startswith(("buffer_", "global_"))
        s.ds = op.startswith("ds_")
        s.salu = op.startswith("s_")
        s.trans = op.replace("_e32", "").replace("_e64", "") in TRANS
        s.dot = op.startswith("v_dot")
        s.dpp = any(k in s.mods for k in ("row_", "quad_perm", "wave_"))
        s.perml = op.startswith("v_permlane")
        s.rdl = op.startswith(("v_readlane", "v_readfirstlane"))
        s.nops = 1
        if op == "s_nop": s.nops = int(ops[0]) + 1
        R = [regs(o) for o in ops]
        s.w = []; s.r = []; s.srcC = []; s.srcAB = []
        if s.valu or s.mfma:
            s.w = list(R[0]) if R else []
            srcs = R[1:]
            if op.startswith("v_cmp") and not op.startswith("v_cmpx"):
                pass
            if re.match(r"v_(add|sub|subrev|addc|subb)_co", op):
                s.w += R[1]; srcs = R[2:]
            if s.perml and "swap" in op:
                s.w = R[0] + R[1]; srcs = R
            if op.startswith(("v_fmac", "v_dot2c", "v_mac")) or (s.dpp and False):
                srcs = srcs + [R[0]]
            if s.dpp: srcs = srcs + [R[0]]
            if op.startswith("v_cndmask") and len(ops) == 3: srcs = srcs + [regs("vcc")]
            if op.startswith("v_writelane"): srcs = srcs + [R[0]]
            for x in srcs: s.r += x
            if s.mfma: s.srcAB = R[1] + R[2]; s.srcC = R[3]
            if s.dot:
                if op.startswith("v_dot2c"): s.srcAB = R[1] + R[2]; s.srcC = R[0]
                else: s.srcAB = R[1] + R[2]; s.srcC = R[3]
        elif s.vmem or s.ds:
            isload = ("load" in op) or op.startswith("ds_read") or op.startswith("ds_bpermute") or ("_rtn" in op)
            atomic_ret = "atomic" in op and "sc0" in s.mods
            if isload and " lds" not in (" " + s.mods):
                s.w = R[0];
                for x in R[1:]: s.r += x
            elif atomic_ret and op.startswith("global"):
                s.w = R[0]
                for x in R[1:]: s.r += x
            else:
                for x in R: s.r += x
                if atomic_ret: s.w = R[0]
            s.store_wide = ("store" in op and ("x3" in op or "x4" in op))
            if s.store_wide:
                s.sdata = R[0] if op.startswith("buffer") else R[1]
        elif s.salu:
            if op.startswith(("s_cmp", "s_cbranch", "s_branch", "s_waitcnt", "s_nop", "s_barrier", "s_endpgm", "s_sleep", "s_setprio", "s_bitcmp")):
                for x in R: s.r += x
            else:
                s.w = R[0] if R else []
                for x in R[1:]: s.r += x
def need(a, b):
    n = 0
    aw = set(a.w); br = set(b.r); bw = set(b.w)
    avw = {x for x in aw if x[0] in "va"}; asw = {x for x in aw if x[0] == "s"}
    if a.valu:
        if avw & br:
            if b.valu and b.dpp: n = max(n, 2)
            if b.perml: n = max(n, 2)
            if b.rdl: n = max(n, 1)
            if b.mfma: n = max(n, 2)
            if a.trans and b.valu and not b.trans: n = max(n, 1)
            if a.trans and (b.vmem or b.ds or b.mfma): n = max(n, 1)
        if a.dot and (avw & (br | bw)):
            same = b.dot and b.op == a.op
            if same and not (avw & set(b.srcAB)): pass
            else: n = max(n, 3)
        if asw & br:
            if b.vmem: n = max(n, 5)
            if b.valu: n = max(n, 4 if b.op.startswith(("v_readlane", "v_writelane")) else 2)
        if ("s", 126) in asw: n = max(n, 5)
    if a.mfma:
        if b.mfma:
            if avw & set(b.srcAB): n = max(n, 8)
            if avw & set(b.srcC) and set(b.srcC) != avw: n = max(n, 6)
        elif b.valu or b.vmem or b.ds:
            if avw & (br | bw): n = max(n, 8)
            if b.valu and (set(a.srcC) & bw): n = max(n, 3)
    if a.vmem and getattr(a, "store_wide", False):
        if set(a.sdata) & bw: n = max(n, 2 if (b.valu or b.mfma) else 1)
    if a.salu and ("s", 124) in aw and (b.vmem or b.ds): n = max(n, 1)
    return n
class Asm:
    def __init__(s):
        s.lines = []; s.hist = []; s.padded = 0
    def raw(s, t): s.lines.append(t)
    def __call__(s, t):
        for l in t.split("\n"):
            l = l.strip()
            if not l or l.startswith(";"): continue
            if l.endswith(":"): s.label(l[:-1]); continue
            i = Ins(l)
            d = 0; req = 0
            for p in reversed(s.hist):
                req = max(req, need(p, i) - d)
                d += p.nops
                if d >= 10: break
            if req > 0:
                nop = Ins(f"s_nop {req-1}"); s.hist.append(nop); s.lines.append(f"  s_nop {req-1}"); s.padded += req
            s.hist.append(i); s.hist = s.hist[-12:]
            s.lines.append("  " + l)
    def label(s, name):
        s.lines.append(name + ":")
    def flush(s, n=8):
        d = 0; req = 0
        for p in reversed(s.hist):
            w = 8 if p.mfma else (5 if (p.valu and any(x[0] == "s" for x in p.w)) else (3 if p.valu else (2 if getattr(p, "store_wide", False) else 0)))
            req = max(req, w - d); d += p.nops
            if d >= 10: break
        if req > 0: s(f"s_nop {req-1}")
    def text(s): return "\n".join(s.lines) + "\n"
```

```python
import sys, struct
from asmlib import Asm
NAME = "recurrent_scan__mha_block_cached__glu_gated_geglu__decode"
HDR = open("cdna_kernels/%s.s.ref" % NAME).read().split("; Override launch")[0]
def f2u(x): return struct.unpack("<I", struct.pack("<f", x))[0]
L2E = 1.4426950408889634
XD, QS, QF, FR = 0, 5120, 5632, 6144
WS_C, WS_Q, WS_G, WS_O, WS_Y = 4096, 64 << 10, 384 << 10, 768 << 10, 2 << 20
YI = 61440
WS_END = WS_Y + 40 * YI
DPPM = "row_mask:0xf bank_mask:0xf"

def bf16r(a, dst, src):
    a(f"v_cvt_pk_bf16_f32 {dst}, {src}, {src}\nv_and_b32 {dst}, s26, {dst}")
def tags(a):
    a("s_add_u32 s30, s70, 1\ns_and_b32 s30, s30, 15\ns_xor_b32 s31, s30, 15")
    a("s_lshr_b32 s32, s70, 4\ns_add_u32 s32, s32, 1\ns_and_b32 s32, s32, 15")
    a("s_lshr_b32 s33, s70, 8\ns_add_u32 s33, s33, 1\ns_and_b32 s33, s33, 15")
def tagput(a, r):
    for i in range(4): a(f"v_and_or_b32 v{r+i}, v{r+i}, -16, s{30+i}")
def tagchk(a, r, n, acc):
    for q in range(n):
        for i in range(4): a(f"v_xor_b32 v{r+4*q+i}, s{30+i}, v{r+4*q+i}")
    regs = [r + i for i in range(4*n)]
    a(f"v_or3_b32 v{acc}, v{regs[0]}, v{regs[1]}, v{regs[2]}")
    rest = regs[3:]
    while len(rest) >= 2:
        a(f"v_or3_b32 v{acc}, v{acc}, v{rest[0]}, v{rest[1]}"); rest = rest[2:]
    if rest: a(f"v_or_b32 v{acc}, v{acc}, v{rest[0]}")
    a(f"v_and_b32 v{acc}, 15, v{acc}\nv_cmp_ne_u32 vcc, 0, v{acc}")
def masks(a, hi_rows):
    a("v_and_b32 v19, 1, v0\nv_cmp_eq_u32 vcc, 1, v19\nv_mov_b32 v20, 0xffff\nv_mov_b32 v21, s26\nv_cndmask_b32 v20, v20, v21, vcc")
    a(f"v_bfe_u32 v19, v0, 1, {2 if hi_rows else 3}")
    for w in range(4): a(f"v_cmp_eq_u32 vcc, {w}, v19\nv_cndmask_b32 v{2+w}, 0, v20, vcc")
def allred(a, op, r, t, rors, s16=True, s32=True):
    for k in rors: a(f"v_{op}_f32_dpp v{r}, v{r}, v{r} row_ror:{k} {DPPM}")
    if s16: a(f"v_mov_b32 v{t}, v{r}\nv_permlane16_swap_b32 v{r}, v{t}\nv_{op}_f32 v{r}, v{r}, v{t}")
    if s32: a(f"v_mov_b32 v{t}, v{r}\nv_permlane32_swap_b32 v{r}, v{t}\nv_{op}_f32 v{r}, v{r}, v{t}")
def stamp(a, P, i):
    if P.get("stamps"): a(f"s_memrealtime s[{76+2*i}:{77+2*i}]\ns_waitcnt lgkmcnt(0)")
def stamp_out(a, P):
    if not P.get("stamps"): return
    a("s_mov_b64 exec, -1\ns_waitcnt vmcnt(0)")
    stamp(a, P, 7)
    a("s_getreg_b32 s68, hwreg(HW_REG_XCC_ID)\ns_and_b32 s68, s68, 15\ns_lshl_b32 s7, s25, 8\ns_or_b32 s68, s68, s7")
    a(f"s_mul_i32 s7, s2, 5\ns_add_u32 s7, s7, s72\ns_lshl_b32 s69, s7, 2\ns_lshl_b32 s7, s7, 6\ns_add_u32 s7, s7, {512<<20}\ns_add_u32 s69, s69, {600<<20}")
    a("v_mov_b32 v1, s7")
    for i in range(16): a(f"v_mov_b32 v{4+i}, s{76+i}")
    for i in range(4): a(f"global_store_dwordx4 v1, v[{4+4*i}:{7+4*i}], s[58:59] offset:{16*i}")
    a("v_mov_b32 v2, s69\nv_mov_b32 v3, s68\nglobal_store_dword v2, v3, s[58:59]")

def stream(a, P):
    S = P["S"]; XB = P["xbuf"]
    KR, VR, XR, SC, T = 64, 128, 192, 24, 40
    Q, D, A0 = 10, 14, 48
    a("L_stream:")
    a("s_sub_u32 s3, s3, 1\ns_xor_b32 s6, s3, s5\ns_and_b32 s6, s6, 1\ns_lshl_b32 s34, s6, 5\ns_add_u32 s34, s34, s4\ns_lshl_b32 s7, s34, 22")
    a("v_lshlrev_b32 v6, 4, v0\nv_add_u32 v7, 0x1000, v6\nv_add_u32 v8, 0x2000, v6\nv_add_u32 v9, 0x3000, v6")
    a(f"s_lshr_b32 s35, s3, 1\ns_lshl_b32 s24, s5, 1\ns_add_u32 s35, s35, s24\ns_mul_i32 s24, s35, {S*16384}")
    a("s_mov_b32 s10, 0x400000\ns_mov_b32 s11, 0x20000\ns_mov_b32 s14, 0x400000\ns_mov_b32 s15, 0x20000")
    a("s_waitcnt lgkmcnt(0)")
    a("s_load_dword s70, s[58:59], 0")
    a("s_add_u32 s8, s38, s7\ns_addc_u32 s9, s39, 0\ns_add_u32 s12, s40, s7\ns_addc_u32 s13, s41, 0")
    def burst(base, srd, brk=0):
        for n in range(16):
            if brk and n % brk == 0: a("s_nop 0")
            a(f"buffer_load_dwordx4 v[{base+4*n}:{base+4*n+3}], v{6+n//4}, s[{srd}:{srd+3}], s24 offen offset:{(n%4)*1024} nt")
    a("s_barrier")
    burst(KR, 8); burst(VR, 12, P["brk"])
    if XB:
        a("s_add_u32 s24, s24, 0x4000"); burst(XR, 8, P["brk"]); a("s_sub_u32 s24, s24, 0x4000")
    stamp(a, P, 1)
    a(f"s_mov_b32 s28, {f2u(128**-0.5):#x}\ns_mov_b32 s29, {f2u(L2E):#x}")
    a(f"s_mov_b32 s20, s58\ns_mov_b32 s21, s59\ns_mov_b32 s22, {WS_END}\ns_mov_b32 s23, 0x20000")
    masks(a, False)
    for i in range(4): a(f"v_mov_b32 v{D+i}, 0")
    a("v_mov_b32 v18, 0xff800000\nv_mov_b32 v19, 0")
    a(f"s_lshl_b32 s7, s34, 8\ns_add_u32 s7, s7, {WS_C}\nv_mov_b32 v20, s7\nv_mov_b32 v21, 1")
    a(f"v_and_b32 v1, 15, v0\nv_lshlrev_b32 v1, 4, v1\ns_lshl_b32 s7, s6, 8\ns_add_u32 s7, s7, {QS}\nv_add_u32 v1, s7, v1")
    a("s_mov_b32 s25, 0\ns_waitcnt lgkmcnt(0)")
    tags(a)
    a("s_mov_b32 s7, 0\nv_mov_b32 v23, 0")
    a("L_qw:")
    a(f"ds_read_b32 v24, v23 offset:{QF}\nds_read_b128 v[{Q}:{Q+3}], v1\ns_add_u32 s7, s7, 1\ns_waitcnt lgkmcnt(0)\nv_cmp_ne_u32 vcc, 0, v24\ns_cbranch_vccnz L_qgo")
    a("s_sleep 1\ns_cmp_lt_u32 s7, 0x40000\ns_cbranch_scc1 L_qw")
    a("L_qgo:")
    stamp(a, P, 2)
    a("L_loop:")
    a_real = a
    if P.get("nocomp"):
        def a(t):
            for l in t.split("\n"):
                if l.startswith("v_") and not l.startswith(("v_readfirst",)): continue
                a_real(l)
    if XB:
        a("s_cmp_lg_u32 s25, 1\ns_cbranch_scc1 L_nocopy\ns_waitcnt vmcnt(16)")
        for i in range(64): a(f"v_mov_b32 v{KR+i}, v{XR+i}")
        a("L_nocopy:")
    def red(g):
        s = SC + 4*g
        a(f"v_add_f32_dpp v{s}, v{s}, v{s} row_ror:8 row_mask:0xf bank_mask:0x3\nv_add_f32_dpp v{s+2}, v{s+2}, v{s+2} row_ror:8 row_mask:0xf bank_mask:0x3")
        a(f"v_add_f32_dpp v{s}, v{s+1}, v{s+1} row_ror:8 row_mask:0xf bank_mask:0xc\nv_add_f32_dpp v{s+2}, v{s+3}, v{s+3} row_ror:8 row_mask:0xf bank_mask:0xc")
    def red2(g):
        s = SC + 4*g
        a(f"v_add_f32_dpp v{T+g}, v{s}, v{s} row_shl:4 row_mask:0xf bank_mask:0x5\nv_add_f32_dpp v{T+g}, v{s+2}, v{s+2} row_shr:4 row_mask:0xf bank_mask:0xa")
    for n in range(16):
        a(f"s_waitcnt vmcnt({31-n})")
        k = KR + 4*n
        a(f"v_dot2_f32_bf16 v{SC+n}, v{k}, v{Q}, 0")
        for e in range(1, 4): a(f"v_dot2_f32_bf16 v{SC+n}, v{k+e}, v{Q+e}, v{SC+n}")
        if n % 4 == 0 and n > 0: red(n//4 - 1)
        if n % 4 == 1 and n > 1: red2(n//4 - 1)
    a(f"v_readfirstlane_b32 s7, v22\ns_add_u32 s24, s24, 0x4000\ns_add_u32 s25, s25, 1\ns_cmp_lt_u32 s25, {S}\ns_cbranch_scc1 L_stat")
    a(f"s_add_u32 s7, s7, {16*S}\ns_lshl_b32 s24, s7, 14\ns_cmp_lt_u32 s7, 256\ns_cselect_b32 s10, s10, 0\ns_cselect_b32 s24, s24, 0")
    a("L_stat:")
    if XB: a("s_cmp_eq_u32 s25, 1\ns_cbranch_scc1 L_nok")
    burst(KR, 8)
    if XB: a("L_nok:")
    red(3); red2(3)
    for qp in ("[1,0,3,2]", "[2,3,0,1]"):
        for g in range(4): a(f"v_add_f32_dpp v{T+g}, v{T+g}, v{T+g} quad_perm:{qp} {DPPM}")
    def rnd():
        a(f"v_cvt_pk_bf16_f32 v{T+4}, v{T}, v{T+1}\nv_cvt_pk_bf16_f32 v{T+5}, v{T+2}, v{T+3}")
        a(f"v_lshlrev_b32 v{T}, 16, v{T+4}\nv_and_b32 v{T+1}, s26, v{T+4}\nv_lshlrev_b32 v{T+2}, 16, v{T+5}\nv_and_b32 v{T+3}, s26, v{T+5}")
    rnd()
    for g in range(4): a(f"v_mul_f32 v{T+g}, s28, v{T+g}")
    rnd()
    a(f"v_max3_f32 v{T+4}, v{T}, v{T+1}, v{T+2}\nv_max_f32 v{T+4}, v{T+4}, v{T+3}")
    allred(a, "max", T+4, T+5, (4, 8))
    a(f"v_mul_f32 v{T+4}, s29, v{T+4}\nv_max_f32 v{T+4}, v{T+4}, v18\nv_sub_f32 v{T+5}, v18, v{T+4}\nv_mov_b32 v18, v{T+4}\nv_exp_f32 v{T+5}, v{T+5}")
    for g in range(4): a(f"v_fma_f32 v{T+g}, v{T+g}, s29, -v18")
    for g in range(4): a(f"v_exp_f32 v{T+g}, v{T+g}")
    for i in range(4): a(f"v_mul_f32 v{D+i}, v{D+i}, v{T+5}")
    a(f"v_fma_f32 v19, v19, v{T+5}, v{T}\nv_add_f32 v{T+4}, v{T+1}, v{T+2}\nv_add_f32 v19, v19, v{T+3}\nv_add_f32 v19, v19, v{T+4}")
    for g in range(4): a(f"v_cvt_pk_bf16_f32 v{T+g}, v{T+g}, v{T+g}")
    for n in range(16):
        A = A0 + 4*(n & 1)
        for w in range(4): a(f"v_and_b32_dpp v{A+w}, v{T+n//4}, v{2+w} row_newbcast:{8*(n&1)+4*((n>>1)&1)} {DPPM}")
        a(f"s_waitcnt vmcnt({31-n})")
        a(f"v_mfma_f32_16x16x32_bf16 v[{D}:{D+3}], v[{A}:{A+3}], v[{VR+4*n}:{VR+4*n+3}], v[{D}:{D+3}]")
    a("s_cmp_eq_u32 s10, 0\ns_cbranch_scc1 L_done")
    a(f"s_cmp_lt_u32 s25, {S-1}\ns_cbranch_scc1 L_noat")
    a("s_mov_b64 exec, 1\nglobal_atomic_add v22, v20, v21, s[58:59] sc0 sc1\ns_mov_b64 exec, -1")
    a("L_noat:")
    burst(VR, 12)
    if P.get("stamps"):
        a("s_cmp_lg_u32 s25, 1\ns_cbranch_scc1 L_loop"); stamp(a, P, 3)
    a("s_branch L_loop")
    a = a_real
    a("L_done:")
    stamp(a, P, 4)
    allred(a, "add", 19, 23, (4, 8))
    a("v_bfe_u32 v24, v0, 1, 3\nv_lshlrev_b32 v24, 12, v24\nv_and_b32 v25, 1, v0\nv_lshl_add_u32 v24, v25, 6, v24")
    a("v_bfe_u32 v25, v0, 4, 1\nv_lshl_add_u32 v24, v25, 5, v24\nv_lshrrev_b32 v25, 5, v0\nv_lshl_add_u32 v24, v25, 4, v24")
    a(f"s_lshl_b32 s7, s4, 15\ns_lshl_b32 s6, s6, 4\ns_add_u32 s6, s6, s35\ns_lshl_b32 s6, s6, 7\ns_add_u32 s7, s7, s6\ns_add_u32 s7, s7, {WS_O}")
    a(f"v_permlane32_swap_b32 v{D}, v{D+2}\nv_permlane32_swap_b32 v{D+1}, v{D+3}")
    a(f"v_mov_b32 v{D+2}, v18\nv_mov_b32 v{D+3}, v19")
    tagput(a, D)
    a(f"buffer_store_dwordx4 v[{D}:{D+3}], v24, s[20:23], s7 offen sc0 sc1")
    a("s_barrier")
    if P.get("notail"): a("s_branch L_send")
    a("s_cmp_lt_i32 s27, 0\ns_cbranch_scc1 L_send")
    Y, Z = 64, 128
    a(f"s_mul_i32 s34, s27, {YI}\ns_add_u32 s34, s34, {WS_Y}\ns_mul_i32 s7, s3, 7168\ns_add_u32 s35, s34, s7\ns_add_u32 s35, s35, 0x8000\ns_lshl_b32 s7, s3, 13\ns_add_u32 s34, s34, s7")
    a("s_mov_b32 s16, s36\ns_mov_b32 s17, s37\ns_mov_b32 s18, 2560\ns_mov_b32 s19, 0x20000\ns_lshl_b32 s24, s27, 6")
    a("v_and_b32 v24, 7, v0\nv_lshlrev_b32 v24, 3, v24\nv_lshrrev_b32 v25, 4, v0\nv_lshl_add_u32 v24, v25, 1, v24")
    a("buffer_load_ushort v26, v24, s[16:19], s24 offen")
    a(f"v_lshlrev_b32 v27, 2, v0\ns_lshl_b32 s7, s3, 8\ns_add_u32 s7, s7, {FR}\nv_add_u32 v28, s7, v27\ns_mov_b32 s6, 0")
    a("L_zpoll:")
    for i in range(4): a(f"v_mov_b32 v{Z+24+i}, s{30+i}")
    for i in range(7):
        if i == 6: a("s_cmp_eq_u32 s3, 3\ns_cbranch_scc1 L_z6")
        a(f"buffer_load_dwordx4 v[{Z+4*i}:{Z+4*i+3}], v{6+i//4}, s[20:23], s35 offen offset:{(i%4)*1024} sc0 sc1")
    a("L_z6:")
    a("s_waitcnt vmcnt(0)")
    tagchk(a, Z, 7, 29)
    a("s_add_u32 s6, s6, 1\ns_cbranch_vccz L_zok\ns_cmp_lt_u32 s6, 0x4000\ns_cbranch_scc1 L_zpoll\nL_zok:")
    for i in range(12): a(f"v_add_f32 v{Z+i}, v{Z+i}, v{Z+16+i}")
    for st in (8, 4):
        for i in range(st): a(f"v_add_f32 v{Z+i}, v{Z+i}, v{Z+st+i}")
    for i in range(4): a(f"v_add_f32_dpp v{Z+i}, v{Z+i}, v{Z+i} row_ror:8 {DPPM}")
    a("s_barrier")
    stamp(a, P, 5)
    a("L_fpoll:")
    for i in range(8): a(f"buffer_load_dwordx4 v[{Y+4*i}:{Y+4*i+3}], v{6+i//4}, s[20:23], s34 offen offset:{(i%4)*1024} sc0 sc1")
    a("s_waitcnt vmcnt(0)")
    tagchk(a, Y, 8, 29)
    a("s_add_u32 s6, s6, 1\ns_cbranch_vccz L_fok\ns_cmp_lt_u32 s6, 0x4000\ns_cbranch_scc1 L_fpoll\nL_fok:")
    stamp(a, P, 6)
    for st in (16, 8, 4):
        for i in range(st): a(f"v_add_f32 v{Y+i}, v{Y+i}, v{Y+st+i}")
    for i in range(4): a(f"v_add_f32_dpp v{Z+i}, v{Y+i}, v{Y+i} row_ror:8 row_mask:0xf bank_mask:0x3")
    Y = Z
    a(f"v_permlane16_swap_b32 v{Y}, v{Y+1}\nv_permlane16_swap_b32 v{Y+2}, v{Y+3}\nv_add_f32 v{Y}, v{Y}, v{Y+1}\nv_add_f32 v{Y+2}, v{Y+2}, v{Y+3}")
    a(f"v_permlane32_swap_b32 v{Y}, v{Y+2}\nv_add_f32 v{Y}, v{Y}, v{Y+2}")
    a(f"ds_write_b32 v28, v{Y}\ns_waitcnt lgkmcnt(0)\ns_barrier")
    a("s_cmp_lg_u32 s3, 0\ns_cbranch_scc1 L_send")
    a(f"ds_read2st64_b32 v[30:31], v27 offset0:{FR//256} offset1:{FR//256+1}\nds_read2st64_b32 v[32:33], v27 offset0:{FR//256+2} offset1:{FR//256+3}")
    a("s_mov_b32 s16, s54\ns_mov_b32 s17, s55\nv_lshlrev_b32 v26, 16, v26")
    a("s_waitcnt lgkmcnt(0)\nv_add_f32 v30, v30, v31\nv_add_f32 v32, v32, v33\nv_add_f32 v30, v30, v32")
    bf16r(a, "v30", "v30")
    a(f"v_mov_b32_dpp v31, v30 row_ror:8 {DPPM}")
    a(f"v_mul_f32 v32, {f2u(-L2E):#x}, v31\nv_exp_f32 v32, v32\nv_add_f32 v32, 1.0, v32\nv_rcp_f32 v32, v32\nv_mul_f32 v31, v31, v32")
    bf16r(a, "v31", "v31")
    a("v_mul_f32 v30, v30, v31"); bf16r(a, "v30", "v30")
    a("v_add_f32 v30, v30, v26\nv_cvt_pk_bf16_f32 v30, v30, v30")
    a("s_mov_b32 exec_lo, 0x00ff00ff\ns_mov_b32 exec_hi, 0x00ff00ff")
    a("buffer_store_short v30, v24, s[16:19], s24 offen")
    a("s_cmp_lg_u32 s27, 0\ns_cbranch_scc1 L_send")
    a("s_lshl_b32 s32, s32, 4\ns_lshl_b32 s33, s33, 8\ns_or_b32 s30, s30, s32\ns_or_b32 s30, s30, s33")
    a("s_mov_b64 exec, 1\nv_mov_b32 v31, s30\nv_mov_b32 v32, 0\nbuffer_store_dword v31, v32, s[20:23], 0 offen sc0 sc1")
    a("L_send:")
    stamp_out(a, P)
    a("s_endpgm")

def mkA(a, dst, src):
    for w in range(4): a(f"v_and_b32 v{dst+w}, v{2+w}, v{src}")

def aux(a, P):
    W, WO, XR, ACC = 64, 144, 24, 224
    if P["prio"]: a(f"s_setprio {P['prio']}")
    a(f"v_mov_b32 v59, 0\nds_write_b32 v59, v59 offset:{QF}")
    a("v_lshrrev_b32 v14, 5, v0\nv_and_b32 v15, 31, v0\nv_mul_u32_u24 v16, 40, v0")
    a("v_lshrrev_b32 v17, 4, v0\nv_and_b32 v18, 15, v0\nv_lshlrev_b32 v22, 13, v17\nv_lshl_add_u32 v22, v18, 4, v22")
    a("s_mul_i32 s7, s5, 655360\ns_lshl_b32 s24, s4, 8\ns_add_u32 s7, s7, s24")
    a("s_mov_b32 s18, 2560\ns_mov_b32 s19, 0x20000\ns_sub_u32 s10, 0x500000, s7\ns_mov_b32 s11, 0x20000\ns_mov_b32 s24, 0")
    a("s_waitcnt lgkmcnt(0)")
    a("s_mov_b32 s16, s36\ns_mov_b32 s17, s37\ns_add_u32 s8, s42, s7\ns_addc_u32 s9, s43, 0")
    a(f"buffer_load_dwordx4 v[{XR}:{XR+3}], v16, s[16:19], 0 offen\nbuffer_load_dwordx4 v[{XR+4}:{XR+7}], v16, s[16:19], 0 offen offset:16\nbuffer_load_dwordx2 v[{XR+8}:{XR+9}], v16, s[16:19], 0 offen offset:32")
    for n in range(20):
        a(f"buffer_load_dwordx4 v[{W+4*n}:{W+4*n+3}], v22, s[8:11], s24 offen nt")
        if n < 19: a("s_add_u32 s24, s24, 0x8000")
    a("s_load_dword s70, s[58:59], 0")
    a(f"s_mov_b32 s20, s58\ns_mov_b32 s21, s59\ns_mov_b32 s22, {WS_END}\ns_mov_b32 s23, 0x20000")
    a(f"v_lshlrev_b32 v58, 13, v0\ns_lshl_b32 s34, s4, 8\ns_add_u32 s34, s34, {WS_C}")
    a("s_cmp_eq_u32 s5, 0\ns_cselect_b32 exec_lo, 3, 0\ns_mov_b32 exec_hi, 0")
    a("buffer_atomic_swap v59, v58, s[20:23], s34 offen sc1\ns_mov_b64 exec, -1")
    a("s_barrier")
    stamp(a, P, 1)
    a("v_mul_u32_u24 v1, 1280, v17\nv_lshl_add_u32 v1, v18, 4, v1")
    SO = ("0", "s60", "s61", "s62")
    def ld640(base, srd, nn=4):
        for n in range(nn):
            for t in range(5): a(f"buffer_load_dwordx4 v[{base+4*(5*n+t)}:{base+4*(5*n+t)+3}], v1, s[{srd}:{srd+3}], {SO[n]} offen offset:{256*t} nt")
    masks(a, True)
    a("v_mul_u32_u24 v19, 2560, v14\nv_mul_u32_u24 v21, 20, v15\nv_add_u32 v19, v19, v21")
    a("v_bfe_u32 v20, v0, 3, 1\nv_lshl_add_u32 v20, v20, 2, v17\nv_mul_u32_u24 v20, 640, v20")
    a("s_mul_i32 s7, s5, 80\nv_add_u32 v21, s7, v20")
    a("v_lshlrev_b32 v22, 4, v0\nv_add_u32 v23, 0x1000, v22")
    a(f"s_lshl_b32 s34, s4, 13\ns_add_u32 s34, s34, {WS_Q}\ns_lshl_b32 s35, s5, 10\ns_add_u32 s35, s35, s34")
    a(f"v_lshlrev_b32 v16, 8, v14\nv_lshl_add_u32 v16, v18, 4, v16\nv_bfe_u32 v15, v0, 4, 1\nv_lshl_add_u32 v16, v15, 3, v16")
    a("s_waitcnt lgkmcnt(0)")
    tags(a)
    F = 34
    a("s_waitcnt vmcnt(20)")
    for i in range(10): a(f"v_lshlrev_b32 v{F+2*i}, 16, v{XR+i}\nv_and_b32 v{F+2*i+1}, s26, v{XR+i}")
    a(f"v_pk_add_f32 v[54:55], v[{F}:{F+1}], v[{F+2}:{F+3}]\nv_pk_add_f32 v[56:57], v[{F+4}:{F+5}], v[{F+6}:{F+7}]")
    for i in range(4, 10, 2): a(f"v_pk_add_f32 v[54:55], v[54:55], v[{F+2*i}:{F+2*i+1}]\nv_pk_add_f32 v[56:57], v[56:57], v[{F+2*i+2}:{F+2*i+3}]")
    a("v_pk_add_f32 v[54:55], v[54:55], v[56:57]\nv_add_f32 v54, v54, v55")
    allred(a, "add", 54, 55, (8, 4, 2, 1), True, False)
    a(f"v_mul_f32 v54, {f2u(-1/640):#x}, v54\nv_mov_b32 v56, 0\nv_mov_b32 v57, 0\nv_mov_b32 v55, v54")
    for i in range(10):
        a(f"v_pk_add_f32 v[{24+2*(i%4)}:{25+2*(i%4)}], v[{F+2*i}:{F+2*i+1}], v[54:55]")
        a(f"v_pk_fma_f32 v[56:57], v[{24+2*(i%4)}:{25+2*(i%4)}], v[{24+2*(i%4)}:{25+2*(i%4)}], v[56:57]")
    a("v_add_f32 v56, v56, v57")
    allred(a, "add", 56, 57, (8, 4, 2, 1), True, False)
    a(f"v_mul_f32 v56, {f2u(1/640):#x}, v56")
    bf16r(a, "v54", "v54"); bf16r(a, "v56", "v56")
    a(f"v_mov_b32 v55, v54\nv_add_f32 v56, {f2u(1e-5):#x}, v56"); bf16r(a, "v56", "v56")
    a("v_sqrt_f32 v56, v56"); bf16r(a, "v56", "v56")
    a("v_rcp_f32 v56, v56")
    for i in range(10): a(f"v_pk_add_f32 v[{F+2*i}:{F+2*i+1}], v[{F+2*i}:{F+2*i+1}], v[54:55]")
    a("v_mov_b32 v57, v56")
    for i in range(10): a(f"v_cvt_pk_bf16_f32 v{24+i}, v{F+2*i}, v{F+2*i+1}")
    for i in range(10): a(f"v_lshlrev_b32 v{F+2*i}, 16, v{24+i}\nv_and_b32 v{F+2*i+1}, s26, v{24+i}")
    for i in range(10): a(f"v_pk_mul_f32 v[{F+2*i}:{F+2*i+1}], v[{F+2*i}:{F+2*i+1}], v[56:57]")
    for i in range(20): a(f"v_cvt_pk_bf16_f32 v{F+i}, v{F+i}, v{F+i}")
    for r in range(4):
        for m in range(5): a(f"ds_write_b32 v19, v{F+4*m+r} offset:{XD+r*640+4*m}")
    a("s_waitcnt lgkmcnt(0)")
    for m in range(5): a(f"ds_read_b128 v[{XR+4*m}:{XR+4*m+3}], v21 offset:{XD+16*m}")
    a("s_waitcnt lgkmcnt(0)")
    def mm20(younger):
        for n in range(20):
            A = 6 + 4*(n & 1)
            mkA(a, A, XR+n)
            a(f"s_waitcnt vmcnt({19-n+younger})")
            a(f"v_mfma_f32_16x16x32_bf16 v[{ACC}:{ACC+3}], v[{A}:{A+3}], v[{W+4*n}:{W+4*n+3}], {'0' if n == 0 else f'v[{ACC}:{ACC+3}]'}")
    mm20(0)
    tagput(a, ACC)
    a(f"buffer_store_dwordx4 v[{ACC}:{ACC+3}], v22, s[20:23], s35 offen sc0 sc1")
    stamp(a, P, 2)
    def qround(R):
        for i in range(8): a(f"buffer_load_dwordx4 v[{R+4*i}:{R+4*i+3}], v{22+i//4}, s[20:23], s34 offen offset:{(i%4)*1024} sc0 sc1")
    a("s_mov_b32 s25, 0")
    if P["qs0"]: a(f"s_sleep {P['qs0']}")
    a("L_qp:")
    qround(W)
    a("s_waitcnt vmcnt(0)")
    tagchk(a, W, 8, 48)
    for st in (16, 8, 4):
        for i in range(st): a(f"v_add_f32 v{W+i}, v{W+i}, v{W+st+i}")
    a("s_add_u32 s25, s25, 1\ns_cbranch_vccz L_qok\ns_cmp_lt_u32 s25, 0x4000\ns_cbranch_scc1 L_qp")
    a("L_qok:")
    a(f"v_cvt_pk_bf16_f32 v44, v{W}, v{W+1}\nv_cvt_pk_bf16_f32 v45, v{W+2}, v{W+3}\nv_mov_b32 v46, 1\nds_write_b64 v16, v[44:45] offset:{QS}\nds_write_b32 v59, v46 offset:{QF}")
    stamp(a, P, 3)
    a(f"v_mul_u32_u24 v16, 20, v14\nv_lshrrev_b32 v19, 2, v18\nv_add_u32 v16, v16, v19\nv_mul_u32_u24 v16, {YI}, v16\nv_and_b32 v19, 3, v0\nv_lshl_add_u32 v16, v19, 5, v16\nv_lshl_add_u32 v16, v15, 4, v16")
    def mm640(base, xr, nn=4):
        for n in range(nn):
            A = 6 + 4*(n & 1)
            mkA(a, A, xr+n)
            for t in range(5):
                acc = ACC + 4*t
                a(f"v_mfma_f32_16x16x32_bf16 v[{acc}:{acc+3}], v[{A}:{A+3}], v[{base+4*(5*n+t)}:{base+4*(5*n+t)+3}], {'0' if n == 0 else f'v[{acc}:{acc+3}]'}")
    def yoffs(extra):
        a(f"s_lshl_b32 s63, s2, 7\ns_add_u32 s63, s63, {WS_Y+extra}")
        for t in range(1, 5): a(f"s_add_u32 s{63+t}, s63, {4*YI*t}")
    def ystore():
        for t in range(5): tagput(a, ACC+4*t)
        for t in range(5): a(f"buffer_store_dwordx4 v[{ACC+4*t}:{ACC+4*t+3}], v16, s[20:23], s{63+t} offen sc0 sc1")
    a("s_mul_i32 s6, s2, 20480\ns_add_u32 s12, s44, s6\ns_addc_u32 s13, s45, 0\ns_mov_b32 s14, 20480\ns_mov_b32 s15, 0x20000\ns_mov_b32 s60, 5120\ns_mov_b32 s61, 10240\ns_mov_b32 s62, 15360")
    if P.get("noaux"): a("s_branch L_noffn")
    if P.get("noffn"): a("s_branch L_wo")
    a("s_cmp_ge_u32 s4, 27\ns_cbranch_scc1 L_wo")
    a("s_mov_b32 s74, 0xff00ff00\ns_mov_b32 s75, 0xff00ff00")
    a("v_mov_b32 v60, s48\nv_mov_b32 v61, s49\nv_mov_b32 v62, s50\nv_mov_b32 v63, s51")
    a("v_cndmask_b32 v60, v60, v62, s[74:75]\nv_cndmask_b32 v61, v61, v63, s[74:75]")
    a("v_and_b32 v19, 7, v0\nv_lshlrev_b32 v62, 4, v19\nv_mul_u32_u24 v63, 3456, v17\nv_add_u32 v62, v62, v63\ns_lshl_b32 s7, s4, 7\ns_mul_i32 s6, s5, 276480\ns_add_u32 s7, s7, s6\nv_add_u32 v62, s7, v62\nv_mov_b32 v63, 0")
    a("v_lshl_add_u64 v[60:61], v[62:63], 0, v[60:61]")
    a("s_mov_b32 s34, 13824\ns_mov_b32 s35, 0")
    if P.get("gub"):
        a(f"v_mov_b32 v{WO}, v60\nv_mov_b32 v{WO+1}, v61")
        for n in range(1, 20): a(f"v_lshl_add_u64 v[{WO+2*n}:{WO+2*n+1}], v[{WO+2*n-2}:{WO+2*n-1}], 0, s[34:35]")
        for n in range(0 if P.get("nogu") else 20): a(f"global_load_dwordx4 v[{W+4*n}:{W+4*n+3}], v[{WO+2*n}:{WO+2*n+1}], off {P.get('gunt', 'nt')}")
    else:
      for n in range(20):
        a(f"global_load_dwordx4 v[{W+4*n}:{W+4*n+3}], v[60:61], off nt")
        if n < 19: a("v_lshl_add_u64 v[60:61], v[60:61], 0, s[34:35]")
    if P.get("diag"): stamp(a, P, 1)
    a("v_lshlrev_b32 v19, 10, v19\nv_bfe_u32 v20, v0, 3, 1\nv_lshl_add_u32 v19, v20, 6, v19\nv_lshl_add_u32 v19, v17, 4, v19")
    a(f"s_lshl_b32 s34, s4, 13\ns_lshl_b32 s7, s5, 7\ns_add_u32 s34, s34, s7\ns_add_u32 s34, s34, {WS_G}\ns_lshl_b32 s35, s2, 10\ns_add_u32 s35, s35, {WS_G}")
    a("s_mul_i32 s6, s2, 10240\ns_add_u32 s16, s52, s6\ns_addc_u32 s17, s53, 0\ns_mov_b32 s18, 10240")
    mm20(0)
    tagput(a, ACC)
    if P.get("diag"): stamp(a, P, 2)
    a(f"buffer_store_dwordx4 v[{ACC}:{ACC+3}], v19, s[20:23], s34 offen sc0 sc1")
    ld640(W, 16, 2)
    a("L_wo:")
    ld640(WO, 12)
    if P.get("diag"): stamp(a, P, 5)
    if P.get("noffn") or P.get("nogp"): a("s_branch L_noffn")
    a("s_cmp_ge_u32 s4, 27\ns_cbranch_scc1 L_noffn\ns_mov_b32 s6, 0")
    G = 24
    a("L_gp:")
    a(f"buffer_load_dwordx4 v[{G}:{G+3}], v22, s[20:23], s35 offen sc0 sc1")
    a("s_waitcnt vmcnt(0)")
    tagchk(a, G, 1, 28)
    a("s_add_u32 s6, s6, 1\ns_cbranch_vccz L_gok\ns_cmp_lt_u32 s6, 0x4000\ns_cbranch_scc1 L_gp\nL_gok:")
    if P.get("diag"): stamp(a, P, 6); a("s_mov_b32 s25, s6")
    for i in range(4): a(f"v_add_f32_dpp v{G+i}, v{G+i}, v{G+i} row_ror:8 {DPPM}")
    a(f"v_permlane16_swap_b32 v{G}, v{G+1}\nv_permlane16_swap_b32 v{G+2}, v{G+3}\nv_add_f32 v{G}, v{G}, v{G+1}\nv_add_f32 v{G+2}, v{G+2}, v{G+3}")
    a(f"v_permlane32_swap_b32 v{G}, v{G+2}\nv_add_f32 v{G}, v{G}, v{G+2}")
    bf16r(a, f"v{G}", f"v{G}")
    a(f"v_mov_b32_dpp v{G+1}, v{G} row_ror:4 {DPPM}")
    c0 = -2 * 0.7978845608028654 * L2E
    a(f"s_mov_b32 s7, {f2u(0.044715):#x}")
    a(f"v_mul_f32 v{G+2}, v{G}, v{G}\nv_mul_f32 v{G+2}, v{G+2}, v{G}\nv_fma_f32 v{G+2}, v{G+2}, s7, v{G}\nv_mul_f32 v{G+2}, {f2u(c0):#x}, v{G+2}")
    a(f"v_exp_f32 v{G+2}, v{G+2}\nv_add_f32 v{G+2}, 1.0, v{G+2}\nv_rcp_f32 v{G+2}, v{G+2}\nv_mul_f32 v{G}, v{G}, v{G+2}")
    bf16r(a, f"v{G}", f"v{G}")
    a(f"v_mul_f32 v{G}, v{G}, v{G+1}\nv_cvt_pk_bf16_f32 v{G}, v{G}, v{G}")
    for half in range(2):
        for n in range(2): a(f"v_mov_b32_dpp v{G+4+n}, v{G} row_newbcast:{2*half+n} row_mask:0xf bank_mask:{'0xc' if half else '0x3'}")
    mm640(W, G+4, 2)
    yoffs(0x8000)
    if not P.get("nofx"): ystore()
    a("L_noffn:")
    stamp(a, P, 4)
    a(f"s_lshl_b32 s34, s2, 12\ns_add_u32 s34, s34, {WS_O}\ns_mov_b32 s6, 0")
    yoffs(0)
    a("s_barrier")
    if P.get("notail"): a("s_branch L_aend")
    if not P.get("diag"): stamp(a, P, 5)
    a("L_op:")
    for i in range(4): a(f"buffer_load_dwordx4 v[{W+4*i}:{W+4*i+3}], v22, s[20:23], s34 offen offset:{i*1024} sc0 sc1")
    a("s_waitcnt vmcnt(0)")
    tagchk(a, W, 4, 28)
    a("s_add_u32 s6, s6, 1\ns_cbranch_vccz L_opk\ns_cmp_lt_u32 s6, 0x4000\ns_cbranch_scc1 L_op\nL_opk:")
    if not P.get("diag"): stamp(a, P, 6)
    a(f"v_max_f32 v24, v{W+2}, v{W+6}\nv_max_f32 v25, v{W+10}, v{W+14}")
    a(f"v_max_f32_dpp v24, v24, v24 row_ror:8 {DPPM}\nv_max_f32_dpp v25, v25, v25 row_ror:8 {DPPM}")
    for sw in ("16", "32"):
        a(f"v_mov_b32 v26, v24\nv_mov_b32 v27, v25\nv_permlane{sw}_swap_b32 v24, v26\nv_permlane{sw}_swap_b32 v25, v27\nv_max_f32 v24, v24, v26\nv_max_f32 v25, v25, v27")
    for i in range(4): a(f"v_sub_f32 v{W+4*i+2}, v{W+4*i+2}, v{24+i//2}")
    for i in range(4): a(f"v_exp_f32 v{W+4*i+2}, v{W+4*i+2}")
    for bb in range(2):
        r = W + 8*bb
        for e in (0, 1, 3): a(f"v_mul_f32 v{r+e}, v{r+e}, v{r+2}")
        for e in (0, 1, 3): a(f"v_fma_f32 v{r+e}, v{r+4+e}, v{r+6}, v{r+e}")
    for e in (0, 1, 3): a(f"v_add_f32_dpp v{W+e}, v{W+e}, v{W+e} row_ror:8 row_mask:0xf bank_mask:0x3")
    for e in (0, 1, 3): a(f"v_add_f32_dpp v{W+e}, v{W+8+e}, v{W+8+e} row_ror:8 row_mask:0xf bank_mask:0xc")
    a(f"v_mov_b32 v26, v{W+3}\nv_permlane16_swap_b32 v{W}, v{W+1}\nv_permlane16_swap_b32 v{W+3}, v26\nv_add_f32 v{W}, v{W}, v{W+1}\nv_add_f32 v{W+3}, v{W+3}, v26")
    a(f"v_mov_b32 v{W+1}, v{W}\nv_mov_b32 v26, v{W+3}\nv_permlane32_swap_b32 v{W}, v{W+1}\nv_permlane32_swap_b32 v{W+3}, v26\nv_add_f32 v{W}, v{W}, v{W+1}\nv_add_f32 v{W+3}, v{W+3}, v26")
    a(f"v_rcp_f32 v{W+3}, v{W+3}\nv_mul_f32 v{W}, v{W}, v{W+3}\nv_cvt_pk_bf16_f32 v{W}, v{W}, v{W}")
    for hi in range(2):
        for half in range(2):
            for n in range(4):
                a(f"v_mov_b32_dpp v{24+n}, v{W} row_newbcast:{8*half+2*n+hi} row_mask:{'0xc' if hi else '0x3'} bank_mask:{'0xc' if half else '0x3'}")
    mm640(WO, 24)
    ystore()
    a("s_cmp_lt_i32 s27, 0\ns_cbranch_scc1 L_aend\ns_barrier")
    a("L_aend:")
    stamp_out(a, P)
    a("s_endpgm")

def gen(fn, **P):
    P.setdefault("S", 12); P.setdefault("xbuf", 1); P.setdefault("qs0", 8); P.setdefault("gub", 1); P.setdefault("brk", 0); P.setdefault("prio", 0)
    a = Asm()
    a.raw(HDR.rstrip("\n"))
    a.raw(f"; @launch grid=(256,1,1) block=(320,1,1) lds=98304")
    a.raw('.amdgcn_target "amdgcn-amd-amdhsa--gfx950"\n.text')
    a.raw(f".globl {NAME}_kernel\n.p2align 8\n.type {NAME}_kernel,@function\n{NAME}_kernel:")
    a("s_cmp_ge_u32 s2, 256\ns_cbranch_scc1 L_exit")
    if P.get("stamps"):
        a("s_memrealtime s[76:77]")
        for i in range(78, 92): a(f"s_mov_b32 s{i}, 0")
    a("s_load_dwordx16 s[36:51], s[0:1], 0\ns_load_dwordx8 s[52:59], s[0:1], 64")
    a("v_lshrrev_b32 v1, 6, v0\nv_and_b32 v0, 63, v0\nv_readfirstlane_b32 s3, v1")
    a("s_lshr_b32 s4, s2, 3\ns_and_b32 s5, s2, 7\ns_sub_u32 s27, s2, 216")
    a("s_mov_b32 s26, 0xffff0000\ns_mov_b32 s72, s3")
    a("s_cmp_lg_u32 s3, 0\ns_cbranch_scc1 L_stream")
    aux(a, P)
    stream(a, P)
    a("L_exit:\ns_endpgm")
    a.raw(f""".section .rodata,"a"
.p2align 6
.amdhsa_kernel {NAME}_kernel
  .amdhsa_next_free_vgpr 256
  .amdhsa_next_free_sgpr 96
  .amdhsa_accum_offset 256
  .amdhsa_group_segment_fixed_size 0
  .amdhsa_kernarg_size 96
  .amdhsa_user_sgpr_count 2
  .amdhsa_user_sgpr_kernarg_segment_ptr 1
  .amdhsa_system_sgpr_workgroup_id_x 1
.end_amdhsa_kernel""")
    open(fn, "w").write(a.text())
    print(fn, "lines", len(a.lines), "padded", a.padded)
if __name__ == "__main__":
    gen("v3.s", brk=16)
    B = dict(stamps=1, brk=16, notail=1)
    gen("x_nt.s", **B); gen("x_ntna.s", noaux=1, **B); gen("x_noffn.s", noffn=1, **B); gen("x_nofx.s", nofx=1, **B)
    gen("x_nogp.s", nogp=1, **B); gen("x_nogu.s", nogu=1, **B); gen("x_nogugp.s", nogu=1, nogp=1, **B); gen("x_gunt.s", gunt="", **B)
```

```python
import sys, struct
from asmlib import Asm
NAME = "recurrent_scan__mha_block_cached__glu_gated_geglu__decode"
HDR = open("cdna_kernels/%s.s.ref" % NAME).read().split("; Override launch")[0]
def f2u(x): return struct.unpack("<I", struct.pack("<f", x))[0]
L2E = 1.4426950408889634
XD, QS, QF, FR = 0, 5120, 5632, 6144
WS_C, WS_Q, WS_G, WS_O, WS_Y = 4096, 64 << 10, 384 << 10, 768 << 10, 2 << 20
YI = 61440
WS_END = WS_Y + 40 * YI
DPPM = "row_mask:0xf bank_mask:0xf"

def bf16r(a, dst, src):
    a(f"v_cvt_pk_bf16_f32 {dst}, {src}, {src}\nv_and_b32 {dst}, s26, {dst}")
def tags(a):
    a("s_add_u32 s30, s70, 1\ns_and_b32 s30, s30, 15\ns_xor_b32 s31, s30, 15")
    a("s_lshr_b32 s32, s70, 4\ns_add_u32 s32, s32, 1\ns_and_b32 s32, s32, 15")
    a("s_lshr_b32 s33, s70, 8\ns_add_u32 s33, s33, 1\ns_and_b32 s33, s33, 15")
def tagput(a, r):
    for i in range(4): a(f"v_and_or_b32 v{r+i}, v{r+i}, -16, s{30+i}")
def tagchk(a, r, n, acc):
    for q in range(n):
        for i in range(4): a(f"v_xor_b32 v{r+4*q+i}, s{30+i}, v{r+4*q+i}")
    regs = [r + i for i in range(4*n)]
    a(f"v_or3_b32 v{acc}, v{regs[0]}, v{regs[1]}, v{regs[2]}")
    rest = regs[3:]
    while len(rest) >= 2:
        a(f"v_or3_b32 v{acc}, v{acc}, v{rest[0]}, v{rest[1]}"); rest = rest[2:]
    if rest: a(f"v_or_b32 v{acc}, v{acc}, v{rest[0]}")
    a(f"v_and_b32 v{acc}, 15, v{acc}\nv_cmp_ne_u32 vcc, 0, v{acc}")
def masks(a, hi_rows):
    a("v_and_b32 v19, 1, v0\nv_cmp_eq_u32 vcc, 1, v19\nv_mov_b32 v20, 0xffff\nv_mov_b32 v21, s26\nv_cndmask_b32 v20, v20, v21, vcc")
    a(f"v_bfe_u32 v19, v0, 1, {2 if hi_rows else 3}")
    for w in range(4): a(f"v_cmp_eq_u32 vcc, {w}, v19\nv_cndmask_b32 v{2+w}, 0, v20, vcc")
def allred(a, op, r, t, rors, s16=True, s32=True):
    for k in rors: a(f"v_{op}_f32_dpp v{r}, v{r}, v{r} row_ror:{k} {DPPM}")
    if s16: a(f"v_mov_b32 v{t}, v{r}\nv_permlane16_swap_b32 v{r}, v{t}\nv_{op}_f32 v{r}, v{r}, v{t}")
    if s32: a(f"v_mov_b32 v{t}, v{r}\nv_permlane32_swap_b32 v{r}, v{t}\nv_{op}_f32 v{r}, v{r}, v{t}")
def stamp(a, P, i):
    if P.get("stamps"): a(f"s_memrealtime s[{76+2*i}:{77+2*i}]\ns_waitcnt lgkmcnt(0)")
def stamp_out(a, P):
    if not P.get("stamps"): return
    a("s_mov_b64 exec, -1\ns_waitcnt vmcnt(0)")
    stamp(a, P, 7)
    a("s_getreg_b32 s68, hwreg(HW_REG_XCC_ID)\ns_and_b32 s68, s68, 15\ns_lshl_b32 s7, s25, 8\ns_or_b32 s68, s68, s7")
    a(f"s_mul_i32 s7, s2, 5\ns_add_u32 s7, s7, s72\ns_lshl_b32 s69, s7, 2\ns_lshl_b32 s7, s7, 6\ns_add_u32 s7, s7, {512<<20}\ns_add_u32 s69, s69, {600<<20}")
    a("v_mov_b32 v1, s7")
    for i in range(16): a(f"v_mov_b32 v{4+i}, s{76+i}")
    for i in range(4): a(f"global_store_dwordx4 v1, v[{4+4*i}:{7+4*i}], s[58:59] offset:{16*i}")
    a("v_mov_b32 v2, s69\nv_mov_b32 v3, s68\nglobal_store_dword v2, v3, s[58:59]")

def stream(a, P):
    S = P["S"]; XB = P["xbuf"]
    KR, VR, XR, SC, T = 64, 128, 192, 24, 40
    Q, D, A0 = 10, 14, 48
    a("L_stream:")
    a("s_sub_u32 s3, s3, 1\ns_xor_b32 s6, s3, s5\ns_and_b32 s6, s6, 1\ns_lshl_b32 s34, s6, 5\ns_add_u32 s34, s34, s4\ns_lshl_b32 s7, s34, 22")
    a("v_lshlrev_b32 v6, 4, v0\nv_add_u32 v7, 0x1000, v6\nv_add_u32 v8, 0x2000, v6\nv_add_u32 v9, 0x3000, v6")
    a(f"s_lshr_b32 s35, s3, 1\ns_lshl_b32 s24, s5, 1\ns_add_u32 s35, s35, s24\ns_mul_i32 s24, s35, {S*16384}")
    a("s_mov_b32 s10, 0x400000\ns_mov_b32 s11, 0x20000\ns_mov_b32 s14, 0x400000\ns_mov_b32 s15, 0x20000")
    a("s_waitcnt lgkmcnt(0)")
    a("s_load_dword s70, s[58:59], 0")
    a("s_add_u32 s8, s38, s7\ns_addc_u32 s9, s39, 0\ns_add_u32 s12, s40, s7\ns_addc_u32 s13, s41, 0")
    def burst(base, srd, brk=0):
        for n in range(16):
            if brk and n % brk == 0: a("s_nop 0")
            a(f"buffer_load_dwordx4 v[{base+4*n}:{base+4*n+3}], v{6+n//4}, s[{srd}:{srd+3}], s24 offen offset:{(n%4)*1024} {P['pol'][srd == 12]}")
    a("s_barrier")
    burst(KR, 8); burst(VR, 12, P["brk"])
    if XB:
        a("s_add_u32 s24, s24, 0x4000"); burst(XR, 8, P["brk"]); a("s_sub_u32 s24, s24, 0x4000")
    stamp(a, P, 1)
    a(f"s_mov_b32 s28, {f2u(128**-0.5):#x}\ns_mov_b32 s29, {f2u(L2E):#x}")
    a(f"s_mov_b32 s20, s58\ns_mov_b32 s21, s59\ns_mov_b32 s22, {WS_END}\ns_mov_b32 s23, 0x20000")
    masks(a, False)
    for i in range(4): a(f"v_mov_b32 v{D+i}, 0")
    a("v_mov_b32 v18, 0xff800000\nv_mov_b32 v19, 0")
    a(f"s_lshl_b32 s7, s34, 8\ns_add_u32 s7, s7, {WS_C}\nv_mov_b32 v20, s7\nv_mov_b32 v21, 1")
    a(f"v_and_b32 v1, 15, v0\nv_lshlrev_b32 v1, 4, v1\ns_lshl_b32 s7, s6, 8\ns_add_u32 s7, s7, {QS}\nv_add_u32 v1, s7, v1")
    a("s_mov_b32 s25, 0\ns_waitcnt lgkmcnt(0)")
    tags(a)
    a("s_mov_b32 s7, 0\nv_mov_b32 v23, 0")
    a("L_qw:")
    a(f"ds_read_b32 v24, v23 offset:{QF}\nds_read_b128 v[{Q}:{Q+3}], v1\ns_add_u32 s7, s7, 1\ns_waitcnt lgkmcnt(0)\nv_cmp_ne_u32 vcc, 0, v24\ns_cbranch_vccnz L_qgo")
    a("s_sleep 1\ns_cmp_lt_u32 s7, 0x40000\ns_cbranch_scc1 L_qw")
    a("L_qgo:")
    stamp(a, P, 2)
    a("L_loop:")
    a_real = a
    if P.get("nocomp"):
        def a(t):
            for l in t.split("\n"):
                if l.startswith("v_") and not l.startswith(("v_readfirst",)): continue
                a_real(l)
    if XB:
        a("s_cmp_lg_u32 s25, 1\ns_cbranch_scc1 L_nocopy\ns_waitcnt vmcnt(16)")
        for i in range(64): a(f"v_mov_b32 v{KR+i}, v{XR+i}")
        a("L_nocopy:")
    def red(g):
        s = SC + 4*g
        a(f"v_add_f32_dpp v{s}, v{s}, v{s} row_ror:8 row_mask:0xf bank_mask:0x3\nv_add_f32_dpp v{s+2}, v{s+2}, v{s+2} row_ror:8 row_mask:0xf bank_mask:0x3")
        a(f"v_add_f32_dpp v{s}, v{s+1}, v{s+1} row_ror:8 row_mask:0xf bank_mask:0xc\nv_add_f32_dpp v{s+2}, v{s+3}, v{s+3} row_ror:8 row_mask:0xf bank_mask:0xc")
    def red2(g):
        s = SC + 4*g
        a(f"v_add_f32_dpp v{T+g}, v{s}, v{s} row_shl:4 row_mask:0xf bank_mask:0x5\nv_add_f32_dpp v{T+g}, v{s+2}, v{s+2} row_shr:4 row_mask:0xf bank_mask:0xa")
    for n in range(16):
        a(f"s_waitcnt vmcnt({31-n})")
        k = KR + 4*n
        a(f"v_dot2_f32_bf16 v{SC+n}, v{k}, v{Q}, 0")
        for e in range(1, 4): a(f"v_dot2_f32_bf16 v{SC+n}, v{k+e}, v{Q+e}, v{SC+n}")
        if n % 4 == 0 and n > 0: red(n//4 - 1)
        if n % 4 == 1 and n > 1: red2(n//4 - 1)
    a(f"v_readfirstlane_b32 s7, v22\ns_add_u32 s24, s24, 0x4000\ns_add_u32 s25, s25, 1\ns_cmp_lt_u32 s25, {S}\ns_cbranch_scc1 L_stat")
    a(f"s_add_u32 s7, s7, {16*S}\ns_lshl_b32 s24, s7, 14\ns_cmp_lt_u32 s7, 256\ns_cselect_b32 s10, s10, 0\ns_cselect_b32 s24, s24, 0")
    a("L_stat:")
    if XB: a("s_cmp_eq_u32 s25, 1\ns_cbranch_scc1 L_nok")
    burst(KR, 8)
    if XB: a("L_nok:")
    red(3); red2(3)
    for qp in ("[1,0,3,2]", "[2,3,0,1]"):
        for g in range(4): a(f"v_add_f32_dpp v{T+g}, v{T+g}, v{T+g} quad_perm:{qp} {DPPM}")
    def rnd():
        a(f"v_cvt_pk_bf16_f32 v{T+4}, v{T}, v{T+1}\nv_cvt_pk_bf16_f32 v{T+5}, v{T+2}, v{T+3}")
        a(f"v_lshlrev_b32 v{T}, 16, v{T+4}\nv_and_b32 v{T+1}, s26, v{T+4}\nv_lshlrev_b32 v{T+2}, 16, v{T+5}\nv_and_b32 v{T+3}, s26, v{T+5}")
    rnd()
    for g in range(4): a(f"v_mul_f32 v{T+g}, s28, v{T+g}")
    rnd()
    a(f"v_max3_f32 v{T+4}, v{T}, v{T+1}, v{T+2}\nv_max_f32 v{T+4}, v{T+4}, v{T+3}")
    allred(a, "max", T+4, T+5, (4, 8))
    a(f"v_mul_f32 v{T+4}, s29, v{T+4}\nv_max_f32 v{T+4}, v{T+4}, v18\nv_sub_f32 v{T+5}, v18, v{T+4}\nv_mov_b32 v18, v{T+4}\nv_exp_f32 v{T+5}, v{T+5}")
    for g in range(4): a(f"v_fma_f32 v{T+g}, v{T+g}, s29, -v18")
    for g in range(4): a(f"v_exp_f32 v{T+g}, v{T+g}")
    for i in range(4): a(f"v_mul_f32 v{D+i}, v{D+i}, v{T+5}")
    a(f"v_fma_f32 v19, v19, v{T+5}, v{T}\nv_add_f32 v{T+4}, v{T+1}, v{T+2}\nv_add_f32 v19, v19, v{T+3}\nv_add_f32 v19, v19, v{T+4}")
    for g in range(4): a(f"v_cvt_pk_bf16_f32 v{T+g}, v{T+g}, v{T+g}")
    for n in range(16):
        A = A0 + 4*(n & 1)
        for w in range(4): a(f"v_and_b32_dpp v{A+w}, v{T+n//4}, v{2+w} row_newbcast:{8*(n&1)+4*((n>>1)&1)} {DPPM}")
        a(f"s_waitcnt vmcnt({31-n})")
        a(f"v_mfma_f32_16x16x32_bf16 v[{D}:{D+3}], v[{A}:{A+3}], v[{VR+4*n}:{VR+4*n+3}], v[{D}:{D+3}]")
    a("s_cmp_eq_u32 s10, 0\ns_cbranch_scc1 L_done")
    a(f"s_cmp_lt_u32 s25, {S-1}\ns_cbranch_scc1 L_noat")
    a("s_mov_b64 exec, 1\nglobal_atomic_add v22, v20, v21, s[58:59] sc0 sc1\ns_mov_b64 exec, -1")
    a("L_noat:")
    burst(VR, 12)
    if P.get("stamps"):
        a("s_cmp_lg_u32 s25, 1\ns_cbranch_scc1 L_loop"); stamp(a, P, 3)
    a("s_branch L_loop")
    a = a_real
    a("L_done:")
    stamp(a, P, 4)
    allred(a, "add", 19, 23, (4, 8))
    a("v_bfe_u32 v24, v0, 1, 3\nv_lshlrev_b32 v24, 12, v24\nv_and_b32 v25, 1, v0\nv_lshl_add_u32 v24, v25, 6, v24")
    a("v_bfe_u32 v25, v0, 4, 1\nv_lshl_add_u32 v24, v25, 5, v24\nv_lshrrev_b32 v25, 5, v0\nv_lshl_add_u32 v24, v25, 4, v24")
    a(f"s_lshl_b32 s7, s4, 15\ns_lshl_b32 s6, s6, 4\ns_add_u32 s6, s6, s35\ns_lshl_b32 s6, s6, 7\ns_add_u32 s7, s7, s6\ns_add_u32 s7, s7, {WS_O}")
    a(f"v_permlane32_swap_b32 v{D}, v{D+2}\nv_permlane32_swap_b32 v{D+1}, v{D+3}")
    a(f"v_mov_b32 v{D+2}, v18\nv_mov_b32 v{D+3}, v19")
    tagput(a, D)
    a(f"buffer_store_dwordx4 v[{D}:{D+3}], v24, s[20:23], s7 offen sc0 sc1")
    a("s_barrier")
    if P.get("notail"): a("s_branch L_send")
    a("s_cmp_lt_i32 s27, 0\ns_cbranch_scc1 L_send")
    Y, Z = 64, 128
    a(f"s_mul_i32 s34, s27, {YI}\ns_add_u32 s34, s34, {WS_Y}\ns_mul_i32 s7, s3, 7168\ns_add_u32 s35, s34, s7\ns_add_u32 s35, s35, 0x8000\ns_lshl_b32 s7, s3, 13\ns_add_u32 s34, s34, s7")
    a("s_mov_b32 s16, s36\ns_mov_b32 s17, s37\ns_mov_b32 s18, 2560\ns_mov_b32 s19, 0x20000\ns_lshl_b32 s24, s27, 6")
    a("v_and_b32 v24, 7, v0\nv_lshlrev_b32 v24, 3, v24\nv_lshrrev_b32 v25, 4, v0\nv_lshl_add_u32 v24, v25, 1, v24")
    a("buffer_load_ushort v26, v24, s[16:19], s24 offen")
    a(f"v_lshlrev_b32 v27, 2, v0\ns_lshl_b32 s7, s3, 8\ns_add_u32 s7, s7, {FR}\nv_add_u32 v28, s7, v27\ns_mov_b32 s6, 0")
    a("L_zpoll:")
    for i in range(4): a(f"v_mov_b32 v{Z+24+i}, s{30+i}")
    for i in range(7):
        if i == 6: a("s_cmp_eq_u32 s3, 3\ns_cbranch_scc1 L_z6")
        a(f"buffer_load_dwordx4 v[{Z+4*i}:{Z+4*i+3}], v{6+i//4}, s[20:23], s35 offen offset:{(i%4)*1024} sc0 sc1")
    a("L_z6:")
    a("s_waitcnt vmcnt(0)")
    tagchk(a, Z, 7, 29)
    a("s_add_u32 s6, s6, 1\ns_cbranch_vccz L_zok\ns_cmp_lt_u32 s6, 0x4000\ns_cbranch_scc1 L_zpoll\nL_zok:")
    for i in range(12): a(f"v_add_f32 v{Z+i}, v{Z+i}, v{Z+16+i}")
    for st in (8, 4):
        for i in range(st): a(f"v_add_f32 v{Z+i}, v{Z+i}, v{Z+st+i}")
    for i in range(4): a(f"v_add_f32_dpp v{Z+i}, v{Z+i}, v{Z+i} row_ror:8 {DPPM}")
    a("s_barrier")
    stamp(a, P, 5)
    a("L_fpoll:")
    for i in range(8): a(f"buffer_load_dwordx4 v[{Y+4*i}:{Y+4*i+3}], v{6+i//4}, s[20:23], s34 offen offset:{(i%4)*1024} sc0 sc1")
    a("s_waitcnt vmcnt(0)")
    tagchk(a, Y, 8, 29)
    a("s_add_u32 s6, s6, 1\ns_cbranch_vccz L_fok\ns_cmp_lt_u32 s6, 0x4000\ns_cbranch_scc1 L_fpoll\nL_fok:")
    stamp(a, P, 6)
    for st in (16, 8, 4):
        for i in range(st): a(f"v_add_f32 v{Y+i}, v{Y+i}, v{Y+st+i}")
    for i in range(4): a(f"v_add_f32_dpp v{Z+i}, v{Y+i}, v{Y+i} row_ror:8 row_mask:0xf bank_mask:0x3")
    Y = Z
    a(f"v_permlane16_swap_b32 v{Y}, v{Y+1}\nv_permlane16_swap_b32 v{Y+2}, v{Y+3}\nv_add_f32 v{Y}, v{Y}, v{Y+1}\nv_add_f32 v{Y+2}, v{Y+2}, v{Y+3}")
    a(f"v_permlane32_swap_b32 v{Y}, v{Y+2}\nv_add_f32 v{Y}, v{Y}, v{Y+2}")
    a(f"ds_write_b32 v28, v{Y}\ns_waitcnt lgkmcnt(0)\ns_barrier")
    a("s_cmp_lg_u32 s3, 0\ns_cbranch_scc1 L_send")
    a(f"ds_read2st64_b32 v[30:31], v27 offset0:{FR//256} offset1:{FR//256+1}\nds_read2st64_b32 v[32:33], v27 offset0:{FR//256+2} offset1:{FR//256+3}")
    a("s_mov_b32 s16, s54\ns_mov_b32 s17, s55\nv_lshlrev_b32 v26, 16, v26")
    a("s_waitcnt lgkmcnt(0)\nv_add_f32 v30, v30, v31\nv_add_f32 v32, v32, v33\nv_add_f32 v30, v30, v32")
    bf16r(a, "v30", "v30")
    a(f"v_mov_b32_dpp v31, v30 row_ror:8 {DPPM}")
    a(f"v_mul_f32 v32, {f2u(-L2E):#x}, v31\nv_exp_f32 v32, v32\nv_add_f32 v32, 1.0, v32\nv_rcp_f32 v32, v32\nv_mul_f32 v31, v31, v32")
    bf16r(a, "v31", "v31")
    a("v_mul_f32 v30, v30, v31"); bf16r(a, "v30", "v30")
    a("v_add_f32 v30, v30, v26\nv_cvt_pk_bf16_f32 v30, v30, v30")
    a("s_mov_b32 exec_lo, 0x00ff00ff\ns_mov_b32 exec_hi, 0x00ff00ff")
    a("buffer_store_short v30, v24, s[16:19], s24 offen")
    a("s_cmp_lg_u32 s27, 0\ns_cbranch_scc1 L_send")
    a("s_lshl_b32 s32, s32, 4\ns_lshl_b32 s33, s33, 8\ns_or_b32 s30, s30, s32\ns_or_b32 s30, s30, s33")
    a("s_mov_b64 exec, 1\nv_mov_b32 v31, s30\nv_mov_b32 v32, 0\nbuffer_store_dword v31, v32, s[20:23], 0 offen sc0 sc1")
    a("L_send:")
    stamp_out(a, P)
    a("s_endpgm")

def mkA(a, dst, src):
    for w in range(4): a(f"v_and_b32 v{dst+w}, v{2+w}, v{src}")

def aux(a, P):
    W, WO, XR, ACC = 64, 144, 24, 224
    if P["prio"]: a(f"s_setprio {P['prio']}")
    a(f"v_mov_b32 v59, 0\nds_write_b32 v59, v59 offset:{QF}")
    a("v_lshrrev_b32 v14, 5, v0\nv_and_b32 v15, 31, v0\nv_mul_u32_u24 v16, 40, v0")
    a("v_lshrrev_b32 v17, 4, v0\nv_and_b32 v18, 15, v0\nv_lshlrev_b32 v22, 13, v17\nv_lshl_add_u32 v22, v18, 4, v22")
    a("s_mul_i32 s7, s5, 655360\ns_lshl_b32 s24, s4, 8\ns_add_u32 s7, s7, s24")
    a("s_mov_b32 s18, 2560\ns_mov_b32 s19, 0x20000\ns_sub_u32 s10, 0x500000, s7\ns_mov_b32 s11, 0x20000\ns_mov_b32 s24, 0")
    a("s_waitcnt lgkmcnt(0)")
    a("s_mov_b32 s16, s36\ns_mov_b32 s17, s37\ns_add_u32 s8, s42, s7\ns_addc_u32 s9, s43, 0")
    a(f"buffer_load_dwordx4 v[{XR}:{XR+3}], v16, s[16:19], 0 offen\nbuffer_load_dwordx4 v[{XR+4}:{XR+7}], v16, s[16:19], 0 offen offset:16\nbuffer_load_dwordx2 v[{XR+8}:{XR+9}], v16, s[16:19], 0 offen offset:32")
    for n in range(20):
        a(f"buffer_load_dwordx4 v[{W+4*n}:{W+4*n+3}], v22, s[8:11], s24 offen nt")
        if n < 19: a("s_add_u32 s24, s24, 0x8000")
    a("s_load_dword s70, s[58:59], 0")
    a(f"s_mov_b32 s20, s58\ns_mov_b32 s21, s59\ns_mov_b32 s22, {WS_END}\ns_mov_b32 s23, 0x20000")
    a(f"v_lshlrev_b32 v58, 13, v0\ns_lshl_b32 s34, s4, 8\ns_add_u32 s34, s34, {WS_C}")
    a("s_cmp_eq_u32 s5, 0\ns_cselect_b32 exec_lo, 3, 0\ns_mov_b32 exec_hi, 0")
    a("buffer_atomic_swap v59, v58, s[20:23], s34 offen sc1\ns_mov_b64 exec, -1")
    a("s_barrier")
    stamp(a, P, 1)
    a("v_mul_u32_u24 v1, 1280, v17\nv_lshl_add_u32 v1, v18, 4, v1")
    SO = ("0", "s60", "s61", "s62")
    def ld640(base, srd, nn=4):
        for n in range(nn):
            for t in range(5): a(f"buffer_load_dwordx4 v[{base+4*(5*n+t)}:{base+4*(5*n+t)+3}], v1, s[{srd}:{srd+3}], {SO[n]} offen offset:{256*t} nt")
    masks(a, True)
    a("v_mul_u32_u24 v19, 2560, v14\nv_mul_u32_u24 v21, 20, v15\nv_add_u32 v19, v19, v21")
    a("v_bfe_u32 v20, v0, 3, 1\nv_lshl_add_u32 v20, v20, 2, v17\nv_mul_u32_u24 v20, 640, v20")
    a("s_mul_i32 s7, s5, 80\nv_add_u32 v21, s7, v20")
    a("v_lshlrev_b32 v22, 4, v0\nv_add_u32 v23, 0x1000, v22")
    a(f"s_lshl_b32 s34, s4, 13\ns_add_u32 s34, s34, {WS_Q}\ns_lshl_b32 s35, s5, 10\ns_add_u32 s35, s35, s34")
    a(f"v_lshlrev_b32 v16, 8, v14\nv_lshl_add_u32 v16, v18, 4, v16\nv_bfe_u32 v15, v0, 4, 1\nv_lshl_add_u32 v16, v15, 3, v16")
    a("s_waitcnt lgkmcnt(0)")
    tags(a)
    F = 34
    a("s_waitcnt vmcnt(20)")
    for i in range(10): a(f"v_lshlrev_b32 v{F+2*i}, 16, v{XR+i}\nv_and_b32 v{F+2*i+1}, s26, v{XR+i}")
    a(f"v_pk_add_f32 v[54:55], v[{F}:{F+1}], v[{F+2}:{F+3}]\nv_pk_add_f32 v[56:57], v[{F+4}:{F+5}], v[{F+6}:{F+7}]")
    for i in range(4, 10, 2): a(f"v_pk_add_f32 v[54:55], v[54:55], v[{F+2*i}:{F+2*i+1}]\nv_pk_add_f32 v[56:57], v[56:57], v[{F+2*i+2}:{F+2*i+3}]")
    a("v_pk_add_f32 v[54:55], v[54:55], v[56:57]\nv_add_f32 v54, v54, v55")
    allred(a, "add", 54, 55, (8, 4, 2, 1), True, False)
    a(f"v_mul_f32 v54, {f2u(-1/640):#x}, v54\nv_mov_b32 v56, 0\nv_mov_b32 v57, 0\nv_mov_b32 v55, v54")
    for i in range(10):
        a(f"v_pk_add_f32 v[{24+2*(i%4)}:{25+2*(i%4)}], v[{F+2*i}:{F+2*i+1}], v[54:55]")
        a(f"v_pk_fma_f32 v[56:57], v[{24+2*(i%4)}:{25+2*(i%4)}], v[{24+2*(i%4)}:{25+2*(i%4)}], v[56:57]")
    a("v_add_f32 v56, v56, v57")
    allred(a, "add", 56, 57, (8, 4, 2, 1), True, False)
    a(f"v_mul_f32 v56, {f2u(1/640):#x}, v56")
    bf16r(a, "v54", "v54"); bf16r(a, "v56", "v56")
    a(f"v_mov_b32 v55, v54\nv_add_f32 v56, {f2u(1e-5):#x}, v56"); bf16r(a, "v56", "v56")
    a("v_sqrt_f32 v56, v56"); bf16r(a, "v56", "v56")
    a("v_rcp_f32 v56, v56")
    for i in range(10): a(f"v_pk_add_f32 v[{F+2*i}:{F+2*i+1}], v[{F+2*i}:{F+2*i+1}], v[54:55]")
    a("v_mov_b32 v57, v56")
    for i in range(10): a(f"v_cvt_pk_bf16_f32 v{24+i}, v{F+2*i}, v{F+2*i+1}")
    for i in range(10): a(f"v_lshlrev_b32 v{F+2*i}, 16, v{24+i}\nv_and_b32 v{F+2*i+1}, s26, v{24+i}")
    for i in range(10): a(f"v_pk_mul_f32 v[{F+2*i}:{F+2*i+1}], v[{F+2*i}:{F+2*i+1}], v[56:57]")
    for i in range(20): a(f"v_cvt_pk_bf16_f32 v{F+i}, v{F+i}, v{F+i}")
    for r in range(4):
        for m in range(5): a(f"ds_write_b32 v19, v{F+4*m+r} offset:{XD+r*640+4*m}")
    a("s_waitcnt lgkmcnt(0)")
    for m in range(5): a(f"ds_read_b128 v[{XR+4*m}:{XR+4*m+3}], v21 offset:{XD+16*m}")
    a("s_waitcnt lgkmcnt(0)")
    def mm20(younger):
        for n in range(20):
            A = 6 + 4*(n & 1)
            mkA(a, A, XR+n)
            a(f"s_waitcnt vmcnt({19-n+younger})")
            a(f"v_mfma_f32_16x16x32_bf16 v[{ACC}:{ACC+3}], v[{A}:{A+3}], v[{W+4*n}:{W+4*n+3}], {'0' if n == 0 else f'v[{ACC}:{ACC+3}]'}")
    mm20(0)
    tagput(a, ACC)
    a(f"buffer_store_dwordx4 v[{ACC}:{ACC+3}], v22, s[20:23], s35 offen sc0 sc1")
    stamp(a, P, 2)
    def qround(R):
        for i in range(8): a(f"buffer_load_dwordx4 v[{R+4*i}:{R+4*i+3}], v{22+i//4}, s[20:23], s34 offen offset:{(i%4)*1024} sc0 sc1")
    a("s_mov_b32 s25, 0")
    if P["qs0"]: a(f"s_sleep {P['qs0']}")
    a("L_qp:")
    qround(W)
    a("s_waitcnt vmcnt(0)")
    tagchk(a, W, 8, 48)
    for st in (16, 8, 4):
        for i in range(st): a(f"v_add_f32 v{W+i}, v{W+i}, v{W+st+i}")
    a("s_add_u32 s25, s25, 1\ns_cbranch_vccz L_qok\ns_cmp_lt_u32 s25, 0x4000\ns_cbranch_scc1 L_qp")
    a("L_qok:")
    a(f"v_cvt_pk_bf16_f32 v44, v{W}, v{W+1}\nv_cvt_pk_bf16_f32 v45, v{W+2}, v{W+3}\nv_mov_b32 v46, 1\nds_write_b64 v16, v[44:45] offset:{QS}\nds_write_b32 v59, v46 offset:{QF}")
    stamp(a, P, 3)
    a(f"v_mul_u32_u24 v16, 20, v14\nv_lshrrev_b32 v19, 2, v18\nv_add_u32 v16, v16, v19\nv_mul_u32_u24 v16, {YI}, v16\nv_and_b32 v19, 3, v0\nv_lshl_add_u32 v16, v19, 5, v16\nv_lshl_add_u32 v16, v15, 4, v16")
    def mm640(base, xr, nn=4):
        for n in range(nn):
            A = 6 + 4*(n & 1)
            mkA(a, A, xr+n)
            for t in range(5):
                acc = ACC + 4*t
                a(f"v_mfma_f32_16x16x32_bf16 v[{acc}:{acc+3}], v[{A}:{A+3}], v[{base+4*(5*n+t)}:{base+4*(5*n+t)+3}], {'0' if n == 0 else f'v[{acc}:{acc+3}]'}")
    def yoffs(extra):
        a(f"s_lshl_b32 s63, s2, 7\ns_add_u32 s63, s63, {WS_Y+extra}")
        for t in range(1, 5): a(f"s_add_u32 s{63+t}, s63, {4*YI*t}")
    def ystore():
        for t in range(5): tagput(a, ACC+4*t)
        for t in range(5): a(f"buffer_store_dwordx4 v[{ACC+4*t}:{ACC+4*t+3}], v16, s[20:23], s{63+t} offen sc0 sc1")
    a("s_mul_i32 s6, s2, 20480\ns_add_u32 s12, s44, s6\ns_addc_u32 s13, s45, 0\ns_mov_b32 s14, 20480\ns_mov_b32 s15, 0x20000\ns_mov_b32 s60, 5120\ns_mov_b32 s61, 10240\ns_mov_b32 s62, 15360")
    if P.get("noaux"): a("s_branch L_noffn")
    if P.get("noffn"): a("s_branch L_wo")
    a("s_cmp_ge_u32 s4, 27\ns_cbranch_scc1 L_wo")
    a("s_mov_b32 s74, 0xff00ff00\ns_mov_b32 s75, 0xff00ff00")
    a("v_mov_b32 v60, s48\nv_mov_b32 v61, s49\nv_mov_b32 v62, s50\nv_mov_b32 v63, s51")
    a("v_cndmask_b32 v60, v60, v62, s[74:75]\nv_cndmask_b32 v61, v61, v63, s[74:75]")
    a("v_and_b32 v19, 7, v0\nv_lshlrev_b32 v62, 4, v19\nv_mul_u32_u24 v63, 3456, v17\nv_add_u32 v62, v62, v63\ns_lshl_b32 s7, s4, 7\ns_mul_i32 s6, s5, 276480\ns_add_u32 s7, s7, s6\nv_add_u32 v62, s7, v62\nv_mov_b32 v63, 0")
    a("v_lshl_add_u64 v[60:61], v[62:63], 0, v[60:61]")
    a("s_mov_b32 s34, 13824\ns_mov_b32 s35, 0")
    if P.get("gub"):
        a(f"v_mov_b32 v{WO}, v60\nv_mov_b32 v{WO+1}, v61")
        for n in range(1, 20): a(f"v_lshl_add_u64 v[{WO+2*n}:{WO+2*n+1}], v[{WO+2*n-2}:{WO+2*n-1}], 0, s[34:35]")
        for n in range(0 if P.get("nogu") else 20): a(f"global_load_dwordx4 v[{W+4*n}:{W+4*n+3}], v[{WO+2*n}:{WO+2*n+1}], off {P.get('gunt', 'nt')}")
    else:
      for n in range(20):
        a(f"global_load_dwordx4 v[{W+4*n}:{W+4*n+3}], v[60:61], off nt")
        if n < 19: a("v_lshl_add_u64 v[60:61], v[60:61], 0, s[34:35]")
    if P.get("diag"): stamp(a, P, 1)
    a("v_lshlrev_b32 v19, 10, v19\nv_bfe_u32 v20, v0, 3, 1\nv_lshl_add_u32 v19, v20, 6, v19\nv_lshl_add_u32 v19, v17, 4, v19")
    a(f"s_lshl_b32 s34, s4, 13\ns_lshl_b32 s7, s5, 7\ns_add_u32 s34, s34, s7\ns_add_u32 s34, s34, {WS_G}\ns_lshl_b32 s35, s2, 10\ns_add_u32 s35, s35, {WS_G}")
    a("s_mul_i32 s6, s2, 10240\ns_add_u32 s16, s52, s6\ns_addc_u32 s17, s53, 0\ns_mov_b32 s18, 10240")
    mm20(0)
    tagput(a, ACC)
    if P.get("diag"): stamp(a, P, 2)
    a(f"buffer_store_dwordx4 v[{ACC}:{ACC+3}], v19, s[20:23], s34 offen sc0 sc1")
    ld640(W, 16, 2)
    a("L_wo:")
    ld640(WO, 12)
    if P.get("diag"): stamp(a, P, 5)
    if P.get("noffn") or P.get("nogp"): a("s_branch L_noffn")
    a("s_cmp_ge_u32 s4, 27\ns_cbranch_scc1 L_noffn\ns_mov_b32 s6, 0")
    G = 24
    a("L_gp:")
    a(f"buffer_load_dwordx4 v[{G}:{G+3}], v22, s[20:23], s35 offen sc0 sc1")
    a("s_waitcnt vmcnt(0)")
    tagchk(a, G, 1, 28)
    a("s_add_u32 s6, s6, 1\ns_cbranch_vccz L_gok\ns_cmp_lt_u32 s6, 0x4000\ns_cbranch_scc1 L_gp\nL_gok:")
    if P.get("diag"): stamp(a, P, 6); a("s_mov_b32 s25, s6")
    for i in range(4): a(f"v_add_f32_dpp v{G+i}, v{G+i}, v{G+i} row_ror:8 {DPPM}")
    a(f"v_permlane16_swap_b32 v{G}, v{G+1}\nv_permlane16_swap_b32 v{G+2}, v{G+3}\nv_add_f32 v{G}, v{G}, v{G+1}\nv_add_f32 v{G+2}, v{G+2}, v{G+3}")
    a(f"v_permlane32_swap_b32 v{G}, v{G+2}\nv_add_f32 v{G}, v{G}, v{G+2}")
    bf16r(a, f"v{G}", f"v{G}")
    a(f"v_mov_b32_dpp v{G+1}, v{G} row_ror:4 {DPPM}")
    c0 = -2 * 0.7978845608028654 * L2E
    a(f"s_mov_b32 s7, {f2u(0.044715):#x}")
    a(f"v_mul_f32 v{G+2}, v{G}, v{G}\nv_mul_f32 v{G+2}, v{G+2}, v{G}\nv_fma_f32 v{G+2}, v{G+2}, s7, v{G}\nv_mul_f32 v{G+2}, {f2u(c0):#x}, v{G+2}")
    a(f"v_exp_f32 v{G+2}, v{G+2}\nv_add_f32 v{G+2}, 1.0, v{G+2}\nv_rcp_f32 v{G+2}, v{G+2}\nv_mul_f32 v{G}, v{G}, v{G+2}")
    bf16r(a, f"v{G}", f"v{G}")
    a(f"v_mul_f32 v{G}, v{G}, v{G+1}\nv_cvt_pk_bf16_f32 v{G}, v{G}, v{G}")
    for half in range(2):
        for n in range(2): a(f"v_mov_b32_dpp v{G+4+n}, v{G} row_newbcast:{2*half+n} row_mask:0xf bank_mask:{'0xc' if half else '0x3'}")
    mm640(W, G+4, 2)
    yoffs(0x8000)
    if not P.get("nofx"): ystore()
    a("L_noffn:")
    stamp(a, P, 4)
    a(f"s_lshl_b32 s34, s2, 12\ns_add_u32 s34, s34, {WS_O}\ns_mov_b32 s6, 0")
    yoffs(0)
    a("s_barrier")
    if P.get("notail"): a("s_branch L_aend")
    if not P.get("diag"): stamp(a, P, 5)
    a("L_op:")
    for i in range(4): a(f"buffer_load_dwordx4 v[{W+4*i}:{W+4*i+3}], v22, s[20:23], s34 offen offset:{i*1024} sc0 sc1")
    a("s_waitcnt vmcnt(0)")
    tagchk(a, W, 4, 28)
    a("s_add_u32 s6, s6, 1\ns_cbranch_vccz L_opk\ns_cmp_lt_u32 s6, 0x4000\ns_cbranch_scc1 L_op\nL_opk:")
    if not P.get("diag"): stamp(a, P, 6)
    a(f"v_max_f32 v24, v{W+2}, v{W+6}\nv_max_f32 v25, v{W+10}, v{W+14}")
    a(f"v_max_f32_dpp v24, v24, v24 row_ror:8 {DPPM}\nv_max_f32_dpp v25, v25, v25 row_ror:8 {DPPM}")
    for sw in ("16", "32"):
        a(f"v_mov_b32 v26, v24\nv_mov_b32 v27, v25\nv_permlane{sw}_swap_b32 v24, v26\nv_permlane{sw}_swap_b32 v25, v27\nv_max_f32 v24, v24, v26\nv_max_f32 v25, v25, v27")
    for i in range(4): a(f"v_sub_f32 v{W+4*i+2}, v{W+4*i+2}, v{24+i//2}")
    for i in range(4): a(f"v_exp_f32 v{W+4*i+2}, v{W+4*i+2}")
    for bb in range(2):
        r = W + 8*bb
        for e in (0, 1, 3): a(f"v_mul_f32 v{r+e}, v{r+e}, v{r+2}")
        for e in (0, 1, 3): a(f"v_fma_f32 v{r+e}, v{r+4+e}, v{r+6}, v{r+e}")
    for e in (0, 1, 3): a(f"v_add_f32_dpp v{W+e}, v{W+e}, v{W+e} row_ror:8 row_mask:0xf bank_mask:0x3")
    for e in (0, 1, 3): a(f"v_add_f32_dpp v{W+e}, v{W+8+e}, v{W+8+e} row_ror:8 row_mask:0xf bank_mask:0xc")
    a(f"v_mov_b32 v26, v{W+3}\nv_permlane16_swap_b32 v{W}, v{W+1}\nv_permlane16_swap_b32 v{W+3}, v26\nv_add_f32 v{W}, v{W}, v{W+1}\nv_add_f32 v{W+3}, v{W+3}, v26")
    a(f"v_mov_b32 v{W+1}, v{W}\nv_mov_b32 v26, v{W+3}\nv_permlane32_swap_b32 v{W}, v{W+1}\nv_permlane32_swap_b32 v{W+3}, v26\nv_add_f32 v{W}, v{W}, v{W+1}\nv_add_f32 v{W+3}, v{W+3}, v26")
    a(f"v_rcp_f32 v{W+3}, v{W+3}\nv_mul_f32 v{W}, v{W}, v{W+3}\nv_cvt_pk_bf16_f32 v{W}, v{W}, v{W}")
    for hi in range(2):
        for half in range(2):
            for n in range(4):
                a(f"v_mov_b32_dpp v{24+n}, v{W} row_newbcast:{8*half+2*n+hi} row_mask:{'0xc' if hi else '0x3'} bank_mask:{'0xc' if half else '0x3'}")
    mm640(WO, 24)
    ystore()
    a("s_cmp_lt_i32 s27, 0\ns_cbranch_scc1 L_aend\ns_barrier")
    a("L_aend:")
    stamp_out(a, P)
    a("s_endpgm")

def gen(fn, **P):
    P.setdefault("S", 12); P.setdefault("xbuf", 1); P.setdefault("qs0", 8); P.setdefault("gub", 1); P.setdefault("brk", 16); P.setdefault("pol", ("nt", "nt")); P.setdefault("prio", 0)
    a = Asm()
    a.raw(HDR.rstrip("\n"))
    a.raw(f"; @launch grid=(256,1,1) block=(320,1,1) lds=98304")
    a.raw('.amdgcn_target "amdgcn-amd-amdhsa--gfx950"\n.text')
    a.raw(f".globl {NAME}_kernel\n.p2align 8\n.type {NAME}_kernel,@function\n{NAME}_kernel:")
    a("s_cmp_ge_u32 s2, 256\ns_cbranch_scc1 L_exit")
    if P.get("stamps"):
        a("s_memrealtime s[76:77]")
        for i in range(78, 92): a(f"s_mov_b32 s{i}, 0")
    a("s_load_dwordx16 s[36:51], s[0:1], 0\ns_load_dwordx8 s[52:59], s[0:1], 64")
    a("v_lshrrev_b32 v1, 6, v0\nv_and_b32 v0, 63, v0\nv_readfirstlane_b32 s3, v1")
    a("s_lshr_b32 s4, s2, 3\ns_and_b32 s5, s2, 7\ns_sub_u32 s27, s2, 216")
    a("s_mov_b32 s26, 0xffff0000\ns_mov_b32 s72, s3")
    a("s_cmp_lg_u32 s3, 0\ns_cbranch_scc1 L_stream")
    aux(a, P)
    stream(a, P)
    a("L_exit:\ns_endpgm")
    a.raw(f""".section .rodata,"a"
.p2align 6
.amdhsa_kernel {NAME}_kernel
  .amdhsa_next_free_vgpr 256
  .amdhsa_next_free_sgpr 96
  .amdhsa_accum_offset 256
  .amdhsa_group_segment_fixed_size 0
  .amdhsa_kernarg_size 96
  .amdhsa_user_sgpr_count 2
  .amdhsa_user_sgpr_kernarg_segment_ptr 1
  .amdhsa_system_sgpr_workgroup_id_x 1
.end_amdhsa_kernel""")
    open(fn, "w").write(a.text())
    print(fn, "lines", len(a.lines), "padded", a.padded)
if __name__ == "__main__":
    gen("v3.s")
    gen("p_00.s", pol=("", "")); gen("p_n0.s", pol=("nt", "")); gen("p_s1.s", pol=("sc1", "sc1")); gen("p_s1n.s", pol=("sc1 nt", "sc1 nt"))
    gen("p_s01n.s", pol=("sc0 sc1 nt", "sc0 sc1 nt")); gen("p_s01.s", pol=("sc0 sc1", "sc0 sc1")); gen("p_s0n.s", pol=("sc0 nt", "sc0 nt")); gen("p_0n.s", pol=("", "nt"))
```

```python
import sys, struct
from asmlib import Asm
NAME = "recurrent_scan__mha_block_cached__glu_gated_geglu__decode"
HDR = open("cdna_kernels/%s.s.ref" % NAME).read().split("; Override launch")[0]
def f2u(x): return struct.unpack("<I", struct.pack("<f", x))[0]
L2E = 1.4426950408889634
XD, QS, QF, FR, HD = 0, 5120, 5632, 6144, 7168
WS_C, WS_Q, WS_G, WS_O, WS_Y = 4096, 64 << 10, 384 << 10, 768 << 10, 2 << 20
YI = 36864
WS_END = WS_Y + 40 * YI
DPPM = "row_mask:0xf bank_mask:0xf"

def bf16r(a, dst, src):
    a(f"v_cvt_pk_bf16_f32 {dst}, {src}, {src}\nv_and_b32 {dst}, s26, {dst}")
def tags(a):
    a("s_add_u32 s30, s70, 1\ns_and_b32 s30, s30, 15\ns_xor_b32 s31, s30, 15")
    a("s_lshr_b32 s32, s70, 4\ns_add_u32 s32, s32, 1\ns_and_b32 s32, s32, 15")
    a("s_lshr_b32 s33, s70, 8\ns_add_u32 s33, s33, 1\ns_and_b32 s33, s33, 15")
def tagput(a, r):
    for i in range(4): a(f"v_and_or_b32 v{r+i}, v{r+i}, -16, s{30+i}")
def tagchk(a, r, n, acc):
    for q in range(n):
        for i in range(4): a(f"v_xor_b32 v{r+4*q+i}, s{30+i}, v{r+4*q+i}")
    regs = [r + i for i in range(4*n)]
    a(f"v_or3_b32 v{acc}, v{regs[0]}, v{regs[1]}, v{regs[2]}")
    rest = regs[3:]
    while len(rest) >= 2:
        a(f"v_or3_b32 v{acc}, v{acc}, v{rest[0]}, v{rest[1]}"); rest = rest[2:]
    if rest: a(f"v_or_b32 v{acc}, v{acc}, v{rest[0]}")
    a(f"v_and_b32 v{acc}, 15, v{acc}\nv_cmp_ne_u32 vcc, 0, v{acc}")
def masks(a, hi_rows):
    a("v_and_b32 v19, 1, v0\nv_cmp_eq_u32 vcc, 1, v19\nv_mov_b32 v20, 0xffff\nv_mov_b32 v21, s26\nv_cndmask_b32 v20, v20, v21, vcc")
    a(f"v_bfe_u32 v19, v0, 1, {2 if hi_rows else 3}")
    for w in range(4): a(f"v_cmp_eq_u32 vcc, {w}, v19\nv_cndmask_b32 v{2+w}, 0, v20, vcc")
def allred(a, op, r, t, rors, s16=True, s32=True):
    for k in rors: a(f"v_{op}_f32_dpp v{r}, v{r}, v{r} row_ror:{k} {DPPM}")
    if s16: a(f"v_mov_b32 v{t}, v{r}\nv_permlane16_swap_b32 v{r}, v{t}\nv_{op}_f32 v{r}, v{r}, v{t}")
    if s32: a(f"v_mov_b32 v{t}, v{r}\nv_permlane32_swap_b32 v{r}, v{t}\nv_{op}_f32 v{r}, v{r}, v{t}")
def stamp(a, P, i):
    if P.get("stamps"): a(f"s_memrealtime s[{76+2*i}:{77+2*i}]\ns_waitcnt lgkmcnt(0)")
def stamp_out(a, P):
    if not P.get("stamps"): return
    a("s_mov_b64 exec, -1\ns_waitcnt vmcnt(0)")
    stamp(a, P, 7)
    a("s_getreg_b32 s68, hwreg(HW_REG_XCC_ID)\ns_and_b32 s68, s68, 15\ns_lshl_b32 s7, s25, 8\ns_or_b32 s68, s68, s7")
    a(f"s_mul_i32 s7, s2, 5\ns_add_u32 s7, s7, s72\ns_lshl_b32 s69, s7, 2\ns_lshl_b32 s7, s7, 6\ns_add_u32 s7, s7, {512<<20}\ns_add_u32 s69, s69, {600<<20}")
    a("v_mov_b32 v1, s7")
    for i in range(16): a(f"v_mov_b32 v{4+i}, s{76+i}")
    for i in range(4): a(f"global_store_dwordx4 v1, v[{4+4*i}:{7+4*i}], s[58:59] offset:{16*i}")
    a("v_mov_b32 v2, s69\nv_mov_b32 v3, s68\nglobal_store_dword v2, v3, s[58:59]")

def stream(a, P):
    S = P["S"]; XB = P["xbuf"]
    KR, VR, XR, SC, T = 64, 128, 192, 24, 40
    Q, D, A0 = 10, 14, 48
    a("L_stream:")
    a("s_sub_u32 s3, s3, 1\ns_xor_b32 s6, s3, s5\ns_and_b32 s6, s6, 1\ns_lshl_b32 s34, s6, 5\ns_add_u32 s34, s34, s4\ns_lshl_b32 s7, s34, 22")
    a("v_lshlrev_b32 v6, 4, v0\nv_add_u32 v7, 0x1000, v6\nv_add_u32 v8, 0x2000, v6\nv_add_u32 v9, 0x3000, v6")
    a(f"s_lshr_b32 s35, s3, 1\ns_lshl_b32 s24, s5, 1\ns_add_u32 s35, s35, s24\ns_mul_i32 s24, s35, {S*16384}")
    a("s_mov_b32 s10, 0x400000\ns_mov_b32 s11, 0x20000\ns_mov_b32 s14, 0x400000\ns_mov_b32 s15, 0x20000")
    a("s_waitcnt lgkmcnt(0)")
    a("s_load_dword s70, s[58:59], 0")
    a("s_add_u32 s8, s38, s7\ns_addc_u32 s9, s39, 0\ns_add_u32 s12, s40, s7\ns_addc_u32 s13, s41, 0")
    def burst(base, srd, brk=0):
        for n in range(16):
            if brk and n % brk == 0: a("s_nop 0")
            a(f"buffer_load_dwordx4 v[{base+4*n}:{base+4*n+3}], v{6+n//4}, s[{srd}:{srd+3}], s24 offen offset:{(n%4)*1024} {P['pol'][srd == 12]}")
    a("s_barrier")
    burst(KR, 8); burst(VR, 12, P["brk"])
    if XB:
        a("s_add_u32 s24, s24, 0x4000"); burst(XR, 8, P["brk"]); a("s_sub_u32 s24, s24, 0x4000")
    stamp(a, P, 1)
    a(f"s_mov_b32 s28, {f2u(128**-0.5):#x}\ns_mov_b32 s29, {f2u(L2E):#x}")
    a(f"s_mov_b32 s20, s58\ns_mov_b32 s21, s59\ns_mov_b32 s22, {WS_END}\ns_mov_b32 s23, 0x20000")
    masks(a, False)
    for i in range(4): a(f"v_mov_b32 v{D+i}, 0")
    a("v_mov_b32 v18, 0xff800000\nv_mov_b32 v19, 0")
    a(f"s_lshl_b32 s7, s34, 8\ns_add_u32 s7, s7, {WS_C}\nv_mov_b32 v20, s7\nv_mov_b32 v21, 1")
    if P["atc"]: a("v_lshl_add_u32 v20, v0, 24, v20")
    a(f"v_and_b32 v1, 15, v0\nv_lshlrev_b32 v1, 4, v1\ns_lshl_b32 s7, s6, 8\ns_add_u32 s7, s7, {QS}\nv_add_u32 v1, s7, v1")
    a("s_mov_b32 s25, 0\ns_mov_b32 s61, 0\ns_mov_b32 s63, 0x2000\ns_waitcnt lgkmcnt(0)")
    tags(a)
    a("s_mov_b32 s7, 0\nv_mov_b32 v23, 0")
    a("L_qw:")
    a(f"ds_read_b32 v24, v23 offset:{QF}\nds_read_b128 v[{Q}:{Q+3}], v1\ns_add_u32 s7, s7, 1\ns_waitcnt lgkmcnt(0)\nv_cmp_ne_u32 vcc, 0, v24\ns_cbranch_vccnz L_qgo")
    a("s_sleep 1\ns_cmp_lt_u32 s7, 0x40000\ns_cbranch_scc1 L_qw")
    a("L_qgo:")
    stamp(a, P, 2)
    a("L_loop:")
    a_real = a
    if P.get("nocomp"):
        def a(t):
            for l in t.split("\n"):
                if l.startswith("v_") and not l.startswith(("v_readfirst",)): continue
                a_real(l)
    if XB:
        a("s_cmp_lg_u32 s25, 1\ns_cbranch_scc1 L_nocopy\ns_waitcnt vmcnt(16)")
        for i in range(64): a(f"v_mov_b32 v{KR+i}, v{XR+i}")
        a("L_nocopy:")
    def red(g):
        s = SC + 4*g
        a(f"v_add_f32_dpp v{s}, v{s}, v{s} row_ror:8 row_mask:0xf bank_mask:0x3\nv_add_f32_dpp v{s+2}, v{s+2}, v{s+2} row_ror:8 row_mask:0xf bank_mask:0x3")
        a(f"v_add_f32_dpp v{s}, v{s+1}, v{s+1} row_ror:8 row_mask:0xf bank_mask:0xc\nv_add_f32_dpp v{s+2}, v{s+3}, v{s+3} row_ror:8 row_mask:0xf bank_mask:0xc")
    def red2(g):
        s = SC + 4*g
        a(f"v_add_f32_dpp v{T+g}, v{s}, v{s} row_shl:4 row_mask:0xf bank_mask:0x5\nv_add_f32_dpp v{T+g}, v{s+2}, v{s+2} row_shr:4 row_mask:0xf bank_mask:0xa")
    for n in range(16):
        a(f"s_waitcnt vmcnt({31-n})")
        k = KR + 4*n
        a(f"v_dot2_f32_bf16 v{SC+n}, v{k}, v{Q}, 0")
        for e in range(1, 4): a(f"v_dot2_f32_bf16 v{SC+n}, v{k+e}, v{Q+e}, v{SC+n}")
        if n % 4 == 0 and n > 0: red(n//4 - 1)
        if n % 4 == 1 and n > 1: red2(n//4 - 1)
    N1 = P["n1"]
    a(f"v_readfirstlane_b32 s7, v22\ns_add_u32 s24, s24, 0x4000\ns_add_u32 s25, s25, 1\ns_mov_b32 s60, s61\ns_cmp_lt_u32 s25, {S}\ns_cbranch_scc1 L_stat")
    if N1 >= 256 - 16*S:
        a(f"s_add_u32 s7, s7, {16*S}\ns_lshl_b32 s24, s7, 14\ns_cmp_lt_u32 s7, 256\ns_cselect_b32 s10, s10, 0\ns_cselect_b32 s24, s24, 0")
    else:
        NH = 2 * (256 - 16*S - N1)
        a(f"s_lshl_b32 s62, s7, 1\ns_add_u32 s62, s62, {2*(256-N1)}\ns_add_u32 s24, s7, {32*S-N1}\ns_cmp_lt_u32 s7, {N1}\ns_cselect_b32 s61, 0, 0xff800000\ns_cselect_b32 s10, 0x4000, s63\ns_cselect_b32 s24, s62, s24")
        a(f"s_lshl_b32 s24, s24, 13\ns_add_u32 s10, s10, s24\ns_cmp_lt_u32 s7, {N1+NH}\ns_cselect_b32 s10, s10, 0\ns_cselect_b32 s24, s24, 0")
    a("L_stat:")
    if XB: a("s_cmp_eq_u32 s25, 1\ns_cbranch_scc1 L_nok")
    burst(KR, 8)
    if XB: a("L_nok:")
    red(3); red2(3)
    for qp in ("[1,0,3,2]", "[2,3,0,1]"):
        for g in range(4): a(f"v_add_f32_dpp v{T+g}, v{T+g}, v{T+g} quad_perm:{qp} {DPPM}")
    def rnd():
        a(f"v_cvt_pk_bf16_f32 v{T+4}, v{T}, v{T+1}\nv_cvt_pk_bf16_f32 v{T+5}, v{T+2}, v{T+3}")
        a(f"v_lshlrev_b32 v{T}, 16, v{T+4}\nv_and_b32 v{T+1}, s26, v{T+4}\nv_lshlrev_b32 v{T+2}, 16, v{T+5}\nv_and_b32 v{T+3}, s26, v{T+5}")
    rnd()
    for g in range(4): a(f"v_mul_f32 v{T+g}, s28, v{T+g}")
    rnd()
    if N1 < 256 - 16*S: a(f"v_add_f32 v{T+2}, s60, v{T+2}\nv_add_f32 v{T+3}, s60, v{T+3}")
    a(f"v_max3_f32 v{T+4}, v{T}, v{T+1}, v{T+2}\nv_max_f32 v{T+4}, v{T+4}, v{T+3}")
    allred(a, "max", T+4, T+5, (4, 8))
    a(f"v_mul_f32 v{T+4}, s29, v{T+4}\nv_max_f32 v{T+4}, v{T+4}, v18\nv_sub_f32 v{T+5}, v18, v{T+4}\nv_mov_b32 v18, v{T+4}\nv_exp_f32 v{T+5}, v{T+5}")
    for g in range(4): a(f"v_fma_f32 v{T+g}, v{T+g}, s29, -v18")
    for g in range(4): a(f"v_exp_f32 v{T+g}, v{T+g}")
    for i in range(4): a(f"v_mul_f32 v{D+i}, v{D+i}, v{T+5}")
    a(f"v_fma_f32 v19, v19, v{T+5}, v{T}\nv_add_f32 v{T+4}, v{T+1}, v{T+2}\nv_add_f32 v19, v19, v{T+3}\nv_add_f32 v19, v19, v{T+4}")
    for g in range(4): a(f"v_cvt_pk_bf16_f32 v{T+g}, v{T+g}, v{T+g}")
    for n in range(16):
        A = A0 + 4*(n & 1)
        for w in range(4): a(f"v_and_b32_dpp v{A+w}, v{T+n//4}, v{2+w} row_newbcast:{8*(n&1)+4*((n>>1)&1)} {DPPM}")
        a(f"s_waitcnt vmcnt({31-n})")
        a(f"v_mfma_f32_16x16x32_bf16 v[{D}:{D+3}], v[{A}:{A+3}], v[{VR+4*n}:{VR+4*n+3}], v[{D}:{D+3}]")
    a("s_cmp_eq_u32 s10, 0\ns_cbranch_scc1 L_done")
    if P["atc"]:
        a(f"s_mov_b32 s14, s10\nv_mov_b32 v22, 1\ns_cmp_lt_u32 s25, {S-1}\ns_cbranch_scc1 L_noat")
        a("buffer_atomic_add v22, v20, s[20:23], 0 offen sc0 sc1")
    else:
        a(f"s_cmp_lt_u32 s25, {S-1}\ns_cbranch_scc1 L_noat")
        a("s_mov_b64 exec, 1\nglobal_atomic_add v22, v20, v21, s[58:59] sc0 sc1\ns_mov_b64 exec, -1")
        a("s_mov_b32 s14, s10")
    a("L_noat:")
    burst(VR, 12)
    if P.get("stamps"):
        a("s_cmp_lg_u32 s25, 1\ns_cbranch_scc1 L_loop"); stamp(a, P, 3)
    a("s_branch L_loop")
    a = a_real
    a("L_done:")
    stamp(a, P, 4)
    allred(a, "add", 19, 23, (4, 8))
    a("v_bfe_u32 v24, v0, 1, 3\nv_lshlrev_b32 v24, 12, v24\nv_and_b32 v25, 1, v0\nv_lshl_add_u32 v24, v25, 6, v24")
    a("v_bfe_u32 v25, v0, 4, 1\nv_lshl_add_u32 v24, v25, 5, v24\nv_lshrrev_b32 v25, 5, v0\nv_lshl_add_u32 v24, v25, 4, v24")
    a(f"s_lshl_b32 s7, s4, 15\ns_lshl_b32 s6, s6, 4\ns_add_u32 s6, s6, s35\ns_lshl_b32 s6, s6, 7\ns_add_u32 s7, s7, s6\ns_add_u32 s7, s7, {WS_O}")
    a(f"v_permlane32_swap_b32 v{D}, v{D+2}\nv_permlane32_swap_b32 v{D+1}, v{D+3}")
    a(f"v_mov_b32 v{D+2}, v18\nv_mov_b32 v{D+3}, v19")
    tagput(a, D)
    if not P.get("noox"): a(f"buffer_store_dwordx4 v[{D}:{D+3}], v24, s[20:23], s7 offen sc0 sc1")
    a("s_barrier")
    if P.get("notail"): a("s_branch L_send")
    a("s_cmp_lt_i32 s27, 0\ns_cbranch_scc1 L_send")
    Y, Z = 64, 128
    a(f"s_mul_i32 s34, s27, {YI}\ns_add_u32 s34, s34, {WS_Y}\ns_lshl_b32 s7, s3, 10\ns_add_u32 s35, s34, s7\ns_add_u32 s35, s35, 0x8000\ns_lshl_b32 s7, s3, 13\ns_add_u32 s34, s34, s7")
    a("s_mov_b32 s16, s36\ns_mov_b32 s17, s37\ns_mov_b32 s18, 2560\ns_mov_b32 s19, 0x20000\ns_lshl_b32 s24, s27, 6")
    a("v_and_b32 v24, 7, v0\nv_lshlrev_b32 v24, 3, v24\nv_lshrrev_b32 v25, 4, v0\nv_lshl_add_u32 v24, v25, 1, v24")
    a("buffer_load_ushort v26, v24, s[16:19], s24 offen")
    a(f"v_lshlrev_b32 v27, 2, v0\ns_lshl_b32 s7, s3, 8\ns_add_u32 s7, s7, {FR}\nv_add_u32 v28, s7, v27\ns_mov_b32 s6, 0")
    a("s_cmp_eq_u32 s3, 3\ns_cselect_b32 s74, 0xffffff, -1\ns_cselect_b32 s75, 0, -1")
    a("L_zpoll:")
    for i in range(4): a(f"v_mov_b32 v{Z+i}, s{30+i}")
    a(f"s_mov_b64 exec, s[74:75]\nbuffer_load_dwordx4 v[{Z}:{Z+3}], v6, s[20:23], s35 offen sc0 sc1\ns_mov_b64 exec, -1")
    a("s_waitcnt vmcnt(0)")
    tagchk(a, Z, 1, 29)
    a("s_add_u32 s6, s6, 1\ns_cbranch_vccz L_zok\ns_cmp_lt_u32 s6, 0x4000\ns_cbranch_scc1 L_zpoll\nL_zok:")
    for i in range(4): a(f"v_add_f32_dpp v{Z+i}, v{Z+i}, v{Z+i} row_ror:8 {DPPM}")
    a("s_barrier")
    stamp(a, P, 5)
    a("L_fpoll:")
    for i in range(8): a(f"buffer_load_dwordx4 v[{Y+4*i}:{Y+4*i+3}], v{6+i//4}, s[20:23], s34 offen offset:{(i%4)*1024} sc0 sc1")
    a("s_waitcnt vmcnt(0)")
    tagchk(a, Y, 8, 29)
    a("s_add_u32 s6, s6, 1\ns_cbranch_vccz L_fok\ns_cmp_lt_u32 s6, 0x4000\ns_cbranch_scc1 L_fpoll\nL_fok:")
    stamp(a, P, 6)
    for st in (16, 8, 4):
        for i in range(st): a(f"v_add_f32 v{Y+i}, v{Y+i}, v{Y+st+i}")
    for i in range(4): a(f"v_add_f32_dpp v{Z+i}, v{Y+i}, v{Y+i} row_ror:8 row_mask:0xf bank_mask:0x3")
    Y = Z
    a(f"v_permlane16_swap_b32 v{Y}, v{Y+1}\nv_permlane16_swap_b32 v{Y+2}, v{Y+3}\nv_add_f32 v{Y}, v{Y}, v{Y+1}\nv_add_f32 v{Y+2}, v{Y+2}, v{Y+3}")
    a(f"v_permlane32_swap_b32 v{Y}, v{Y+2}\nv_add_f32 v{Y}, v{Y}, v{Y+2}")
    a(f"ds_write_b32 v28, v{Y}\ns_waitcnt lgkmcnt(0)\ns_barrier")
    a("s_cmp_lg_u32 s3, 0\ns_cbranch_scc1 L_send")
    a(f"ds_read2st64_b32 v[30:31], v27 offset0:{FR//256} offset1:{FR//256+1}\nds_read2st64_b32 v[32:33], v27 offset0:{FR//256+2} offset1:{FR//256+3}")
    a("s_mov_b32 s16, s54\ns_mov_b32 s17, s55\nv_lshlrev_b32 v26, 16, v26")
    a("s_waitcnt lgkmcnt(0)\nv_add_f32 v30, v30, v31\nv_add_f32 v32, v32, v33\nv_add_f32 v30, v30, v32")
    bf16r(a, "v30", "v30")
    a(f"v_mov_b32_dpp v31, v30 row_ror:8 {DPPM}")
    a(f"v_mul_f32 v32, {f2u(-L2E):#x}, v31\nv_exp_f32 v32, v32\nv_add_f32 v32, 1.0, v32\nv_rcp_f32 v32, v32\nv_mul_f32 v31, v31, v32")
    bf16r(a, "v31", "v31")
    a("v_mul_f32 v30, v30, v31"); bf16r(a, "v30", "v30")
    a("v_add_f32 v30, v30, v26\nv_cvt_pk_bf16_f32 v30, v30, v30")
    a("s_mov_b32 exec_lo, 0x00ff00ff\ns_mov_b32 exec_hi, 0x00ff00ff")
    a("buffer_store_short v30, v24, s[16:19], s24 offen " + P["osc"])
    a("s_cmp_lg_u32 s27, 0\ns_cbranch_scc1 L_send")
    a("s_lshl_b32 s32, s32, 4\ns_lshl_b32 s33, s33, 8\ns_or_b32 s30, s30, s32\ns_or_b32 s30, s30, s33")
    a("s_mov_b64 exec, 1\nv_mov_b32 v31, s30\nv_mov_b32 v32, 0\nbuffer_store_dword v31, v32, s[20:23], 0 offen sc0 sc1")
    a("L_send:")
    stamp_out(a, P)
    a("s_endpgm")

def mkA(a, dst, src):
    for w in range(4): a(f"v_and_b32 v{dst+w}, v{2+w}, v{src}")

def aux(a, P):
    W, WO, XR, ACC = 64, 144, 24, 224
    if P["prio"]: a(f"s_setprio {P['prio']}")
    a(f"v_mov_b32 v59, 0\nds_write_b32 v59, v59 offset:{QF}")
    a("v_lshrrev_b32 v14, 5, v0\nv_and_b32 v15, 31, v0\nv_mul_u32_u24 v16, 40, v0")
    a("v_lshrrev_b32 v17, 4, v0\nv_and_b32 v18, 15, v0\nv_lshlrev_b32 v22, 13, v17\nv_lshl_add_u32 v22, v18, 4, v22")
    a("s_mul_i32 s7, s5, 655360\ns_lshl_b32 s24, s4, 8\ns_add_u32 s7, s7, s24")
    a("s_mov_b32 s18, 2560\ns_mov_b32 s19, 0x20000\ns_sub_u32 s10, 0x500000, s7\ns_mov_b32 s11, 0x20000\ns_mov_b32 s24, 0")
    a("s_waitcnt lgkmcnt(0)")
    a("s_mov_b32 s16, s36\ns_mov_b32 s17, s37\ns_add_u32 s8, s42, s7\ns_addc_u32 s9, s43, 0")
    a(f"buffer_load_dwordx4 v[{XR}:{XR+3}], v16, s[16:19], 0 offen\nbuffer_load_dwordx4 v[{XR+4}:{XR+7}], v16, s[16:19], 0 offen offset:16\nbuffer_load_dwordx2 v[{XR+8}:{XR+9}], v16, s[16:19], 0 offen offset:32")
    for n in range(0 if P.get("nowq") else 20):
        a(f"buffer_load_dwordx4 v[{W+4*n}:{W+4*n+3}], v22, s[8:11], s24 offen nt")
        if n < 19: a("s_add_u32 s24, s24, 0x8000")
    a("s_load_dword s70, s[58:59], 0")
    a("v_mul_u32_u24 v1, 1280, v17\nv_lshl_add_u32 v1, v18, 4, v1")
    SO = ("0", "s60", "s61", "s62")
    def ld640(base, srd, nn=4):
        for n in range(nn):
            for t in range(5): a(f"buffer_load_dwordx4 v[{base+4*(5*n+t)}:{base+4*(5*n+t)+3}], v1, s[{srd}:{srd+3}], {SO[n]} offen offset:{256*t} nt")
    a("s_mul_i32 s6, s2, 20480\ns_add_u32 s12, s44, s6\ns_addc_u32 s13, s45, 0\ns_mov_b32 s14, 20480\ns_mov_b32 s15, 0x20000\ns_mov_b32 s60, 5120\ns_mov_b32 s61, 10240\ns_mov_b32 s62, 15360")
    a("s_mov_b32 s74, 0xff00ff00\ns_mov_b32 s75, 0xff00ff00\ns_cmp_ge_u32 s4, 27\ns_cbranch_scc1 L_nogu")
    a("v_mov_b32 v60, s48\nv_mov_b32 v61, s49\nv_mov_b32 v62, s50\nv_mov_b32 v63, s51")
    a("v_cndmask_b32 v60, v60, v62, s[74:75]\nv_cndmask_b32 v61, v61, v63, s[74:75]")
    a("v_and_b32 v19, 7, v0\nv_lshlrev_b32 v62, 4, v19\nv_mul_u32_u24 v63, 3456, v17\nv_add_u32 v62, v62, v63\ns_lshl_b32 s7, s4, 7\ns_mul_i32 s6, s5, 276480\ns_add_u32 s7, s7, s6\nv_add_u32 v62, s7, v62\nv_mov_b32 v63, 0")
    a("v_lshl_add_u64 v[60:61], v[62:63], 0, v[60:61]")
    a("s_mov_b32 s34, 13824\ns_mov_b32 s35, 0")
    for n in range(20):
        a(f"global_load_dwordx4 v[{WO+4*n}:{WO+4*n+3}], v[60:61], off nt")
        if n < 19: a("v_lshl_add_u64 v[60:61], v[60:61], 0, s[34:35]")
    a("s_branch L_gud")
    a("L_nogu:")
    ld640(WO, 12)
    a("L_gud:")
    a(f"s_mov_b32 s20, s58\ns_mov_b32 s21, s59\ns_mov_b32 s22, {WS_END}\ns_mov_b32 s23, 0x20000")
    a(f"v_lshlrev_b32 v58, 13, v0\ns_lshl_b32 s34, s4, 8\ns_add_u32 s34, s34, {WS_C}")
    a("s_cmp_eq_u32 s5, 0\ns_cselect_b32 exec_lo, 3, 0\ns_mov_b32 exec_hi, 0")
    a("buffer_atomic_swap v59, v58, s[20:23], s34 offen sc1\ns_mov_b64 exec, -1")
    a("s_barrier")
    stamp(a, P, 1)
    masks(a, True)
    a("v_mul_u32_u24 v19, 2560, v14\nv_mul_u32_u24 v21, 20, v15\nv_add_u32 v19, v19, v21")
    a("v_bfe_u32 v20, v0, 3, 1\nv_lshl_add_u32 v20, v20, 2, v17\nv_mul_u32_u24 v20, 640, v20")
    a("s_mul_i32 s7, s5, 80\nv_add_u32 v21, s7, v20")
    a("v_lshlrev_b32 v22, 4, v0\nv_add_u32 v23, 0x1000, v22")
    a(f"s_lshl_b32 s34, s4, 13\ns_add_u32 s34, s34, {WS_Q}\ns_lshl_b32 s35, s5, 10\ns_add_u32 s35, s35, s34")
    a(f"v_lshlrev_b32 v16, 8, v14\nv_lshl_add_u32 v16, v18, 4, v16\nv_bfe_u32 v15, v0, 4, 1\nv_lshl_add_u32 v16, v15, 3, v16")
    a("s_waitcnt lgkmcnt(0)")
    tags(a)
    F = 34
    a("s_waitcnt vmcnt(40)")
    for i in range(10): a(f"v_lshlrev_b32 v{F+2*i}, 16, v{XR+i}\nv_and_b32 v{F+2*i+1}, s26, v{XR+i}")
    a(f"v_pk_add_f32 v[54:55], v[{F}:{F+1}], v[{F+2}:{F+3}]\nv_pk_add_f32 v[56:57], v[{F+4}:{F+5}], v[{F+6}:{F+7}]")
    for i in range(4, 10, 2): a(f"v_pk_add_f32 v[54:55], v[54:55], v[{F+2*i}:{F+2*i+1}]\nv_pk_add_f32 v[56:57], v[56:57], v[{F+2*i+2}:{F+2*i+3}]")
    a("v_pk_add_f32 v[54:55], v[54:55], v[56:57]\nv_add_f32 v54, v54, v55")
    allred(a, "add", 54, 55, (8, 4, 2, 1), True, False)
    a(f"v_mul_f32 v54, {f2u(-1/640):#x}, v54\nv_mov_b32 v56, 0\nv_mov_b32 v57, 0\nv_mov_b32 v55, v54")
    for i in range(10):
        a(f"v_pk_add_f32 v[{24+2*(i%4)}:{25+2*(i%4)}], v[{F+2*i}:{F+2*i+1}], v[54:55]")
        a(f"v_pk_fma_f32 v[56:57], v[{24+2*(i%4)}:{25+2*(i%4)}], v[{24+2*(i%4)}:{25+2*(i%4)}], v[56:57]")
    a("v_add_f32 v56, v56, v57")
    allred(a, "add", 56, 57, (8, 4, 2, 1), True, False)
    a(f"v_mul_f32 v56, {f2u(1/640):#x}, v56")
    bf16r(a, "v54", "v54"); bf16r(a, "v56", "v56")
    a(f"v_mov_b32 v55, v54\nv_add_f32 v56, {f2u(1e-5):#x}, v56"); bf16r(a, "v56", "v56")
    a("v_sqrt_f32 v56, v56"); bf16r(a, "v56", "v56")
    a("v_rcp_f32 v56, v56")
    for i in range(10): a(f"v_pk_add_f32 v[{F+2*i}:{F+2*i+1}], v[{F+2*i}:{F+2*i+1}], v[54:55]")
    a("v_mov_b32 v57, v56")
    for i in range(10): a(f"v_cvt_pk_bf16_f32 v{24+i}, v{F+2*i}, v{F+2*i+1}")
    for i in range(10): a(f"v_lshlrev_b32 v{F+2*i}, 16, v{24+i}\nv_and_b32 v{F+2*i+1}, s26, v{24+i}")
    for i in range(10): a(f"v_pk_mul_f32 v[{F+2*i}:{F+2*i+1}], v[{F+2*i}:{F+2*i+1}], v[56:57]")
    for i in range(20): a(f"v_cvt_pk_bf16_f32 v{F+i}, v{F+i}, v{F+i}")
    for r in range(4):
        for m in range(5): a(f"ds_write_b32 v19, v{F+4*m+r} offset:{XD+r*640+4*m}")
    a("s_waitcnt lgkmcnt(0)")
    for m in range(5): a(f"ds_read_b128 v[{XR+4*m}:{XR+4*m+3}], v21 offset:{XD+16*m}")
    a("s_waitcnt lgkmcnt(0)")
    a("s_waitcnt vmcnt(0)")
    for n in range(20):
        A = 6 + 4*(n & 1)
        mkA(a, A, XR+n)
        for acc, base in ((ACC, W), (ACC+4, WO)):
            a(f"v_mfma_f32_16x16x32_bf16 v[{acc}:{acc+3}], v[{A}:{A+3}], v[{base+4*n}:{base+4*n+3}], {'0' if n == 0 else f'v[{acc}:{acc+3}]'}")
    a(f"s_add_u32 s7, s35, {WS_G-WS_Q}")
    tagput(a, ACC); tagput(a, ACC+4)
    a(f"buffer_store_dwordx4 v[{ACC}:{ACC+3}], v22, s[20:23], s35 offen sc0 sc1")
    a(f"buffer_store_dwordx4 v[{ACC+4}:{ACC+7}], v22, s[20:23], s7 offen sc0 sc1")
    stamp(a, P, 2)
    def qround(R):
        for i in range(8): a(f"buffer_load_dwordx4 v[{R+4*i}:{R+4*i+3}], v{22+i//4}, s[20:23], s34 offen offset:{(i%4)*1024} sc0 sc1")
    a("s_mov_b32 s25, 0")
    if P["qs0"]: a(f"s_sleep {P['qs0']}")
    a("L_qp:")
    qround(W)
    a("s_waitcnt vmcnt(0)")
    tagchk(a, W, 8, 48)
    for st in (16, 8, 4):
        for i in range(st): a(f"v_add_f32 v{W+i}, v{W+i}, v{W+st+i}")
    a("s_add_u32 s25, s25, 1\ns_cbranch_vccz L_qok\ns_cmp_lt_u32 s25, 0x4000\ns_cbranch_scc1 L_qp")
    a("L_qok:")
    a(f"v_cvt_pk_bf16_f32 v44, v{W}, v{W+1}\nv_cvt_pk_bf16_f32 v45, v{W+2}, v{W+3}\nv_mov_b32 v46, 1\nds_write_b64 v16, v[44:45] offset:{QS}\nds_write_b32 v59, v46 offset:{QF}")
    stamp(a, P, 3)
    a(f"v_mul_u32_u24 v16, 20, v14\nv_lshrrev_b32 v19, 2, v18\nv_add_u32 v16, v16, v19\nv_mul_u32_u24 v16, {YI}, v16\nv_and_b32 v19, 3, v0\nv_lshl_add_u32 v16, v19, 5, v16\nv_lshl_add_u32 v16, v15, 4, v16")
    def mm640(base, xr, nn=4):
        for n in range(nn):
            A = 6 + 4*(n & 1)
            mkA(a, A, xr+n)
            for t in range(5):
                acc = ACC + 4*t
                a(f"v_mfma_f32_16x16x32_bf16 v[{acc}:{acc+3}], v[{A}:{A+3}], v[{base+4*(5*n+t)}:{base+4*(5*n+t)+3}], {'0' if n == 0 else f'v[{acc}:{acc+3}]'}")
    def yoffs(extra):
        a(f"s_lshl_b32 s63, s2, 7\ns_add_u32 s63, s63, {WS_Y+extra}")
        for t in range(1, 5): a(f"s_add_u32 s{63+t}, s63, {4*YI*t}")
    def ystore():
        for t in range(5): tagput(a, ACC+4*t)
        for t in range(5): a(f"buffer_store_dwordx4 v[{ACC+4*t}:{ACC+4*t+3}], v16, s[20:23], s{63+t} offen sc0 sc1")
    a("s_cmp_ge_u32 s4, 27\ns_cbranch_scc1 L_noffn")
    a("s_mul_i32 s6, s4, 81920\ns_lshl_b32 s7, s5, 8\ns_add_u32 s6, s6, s7\ns_add_u32 s16, s52, s6\ns_addc_u32 s17, s53, 0\ns_sub_u32 s18, 81920, s7")
    a("v_add_u32 v61, 20480, v1\nv_add_u32 v62, 40960, v1\nv_add_u32 v63, 61440, v1")
    a(f"s_add_u32 s34, s34, {WS_G-WS_Q}\ns_mov_b32 s6, 0")
    a("s_cmp_ge_u32 s5, 5\ns_cbranch_scc1 L_wo")
    for n in range(16): a(f"buffer_load_dwordx4 v[{W+4*n}:{W+4*n+3}], v{(1, 61, 62, 63)[n>>2]}, s[16:19], {SO[n&3]} offen nt")
    a("L_wo:")
    ld640(WO, 12)
    a("s_cbranch_scc1 L_noffn")
    G = 24
    a("L_gp:")
    qround(G)
    a("s_waitcnt vmcnt(0)")
    tagchk(a, G, 8, 56)
    a("s_add_u32 s6, s6, 1\ns_cbranch_vccz L_gok\ns_cmp_lt_u32 s6, 0x4000\ns_cbranch_scc1 L_gp\nL_gok:")
    for st in (16, 8, 4):
        for i in range(st): a(f"v_add_f32 v{G+i}, v{G+i}, v{G+st+i}")
    for r in range(4): bf16r(a, f"v{G+r}", f"v{G+r}")
    for r in range(4): a(f"v_mov_b32_dpp v{G+4+r}, v{G+r} row_ror:8 {DPPM}")
    c0 = -2 * 0.7978845608028654 * L2E
    a(f"s_mov_b32 s7, {f2u(0.044715):#x}\ns_mov_b32 s6, {f2u(c0):#x}")
    for r in range(4): a(f"v_mul_f32 v{G+8+r}, v{G+r}, v{G+r}")
    for r in range(4): a(f"v_mul_f32 v{G+8+r}, v{G+8+r}, v{G+r}")
    for r in range(4): a(f"v_fma_f32 v{G+8+r}, v{G+8+r}, s7, v{G+r}")
    for r in range(4): a(f"v_mul_f32 v{G+8+r}, s6, v{G+8+r}")
    for r in range(4): a(f"v_exp_f32 v{G+8+r}, v{G+8+r}")
    for r in range(4): a(f"v_add_f32 v{G+8+r}, 1.0, v{G+8+r}")
    for r in range(4): a(f"v_rcp_f32 v{G+8+r}, v{G+8+r}")
    for r in range(4): a(f"v_mul_f32 v{G+r}, v{G+r}, v{G+8+r}")
    for r in range(4): bf16r(a, f"v{G+r}", f"v{G+r}")
    for r in range(4): a(f"v_mul_f32 v{G+r}, v{G+r}, v{G+4+r}")
    for r in range(4): a(f"v_cvt_pk_bf16_f32 v{G+r}, v{G+r}, v{G+r}")
    a("v_lshlrev_b32 v62, 8, v14\nv_and_b32 v63, 7, v0\nv_lshl_add_u32 v62, v63, 3, v62\nv_lshl_add_u32 v62, v15, 2, v62")
    a("s_not_b64 exec, s[74:75]")
    for r in range(4): a(f"ds_write_b32 v62, v{G+r} offset:{HD+64*r}")
    a("s_mov_b64 exec, -1")
    a("v_bfe_u32 v62, v0, 3, 1\nv_lshl_add_u32 v62, v62, 2, v17\nv_lshlrev_b32 v62, 6, v62")
    a("s_waitcnt lgkmcnt(0)")
    for m in range(4): a(f"ds_read_b128 v[{XR+4*m}:{XR+4*m+3}], v62 offset:{HD+16*m}")
    a(f"s_mul_i32 s7, s5, {4*YI}\ns_lshl_b32 s6, s4, 7\ns_add_u32 s7, s7, s6\ns_add_u32 s7, s7, {WS_Y+0x8000}")
    a("s_waitcnt lgkmcnt(0)")
    for n in range(16):
        A = 6 + 4*(n & 1)
        mkA(a, A, XR+n)
        a(f"v_mfma_f32_16x16x32_bf16 v[{ACC}:{ACC+3}], v[{A}:{A+3}], v[{W+4*n}:{W+4*n+3}], {'0' if n == 0 else f'v[{ACC}:{ACC+3}]'}")
    tagput(a, ACC)
    a(f"buffer_store_dwordx4 v[{ACC}:{ACC+3}], v16, s[20:23], s7 offen sc0 sc1")
    a("L_noffn:")
    stamp(a, P, 4)
    a(f"s_lshl_b32 s34, s2, 12\ns_add_u32 s34, s34, {WS_O}\ns_mov_b32 s6, 0")
    yoffs(0)
    a("s_barrier")
    if P.get("notail"): a("s_branch L_aend")
    if not P.get("diag"): stamp(a, P, 5)
    a("L_op:")
    for i in range(4): a(f"buffer_load_dwordx4 v[{W+4*i}:{W+4*i+3}], v22, s[20:23], s34 offen offset:{i*1024} sc0 sc1")
    a("s_waitcnt vmcnt(0)")
    tagchk(a, W, 4, 28)
    a("s_add_u32 s6, s6, 1\ns_cbranch_vccz L_opk\ns_cmp_lt_u32 s6, 0x4000\ns_cbranch_scc1 L_op\nL_opk:")
    if not P.get("diag"): stamp(a, P, 6)
    a(f"v_max_f32 v24, v{W+2}, v{W+6}\nv_max_f32 v25, v{W+10}, v{W+14}")
    a(f"v_max_f32_dpp v24, v24, v24 row_ror:8 {DPPM}\nv_max_f32_dpp v25, v25, v25 row_ror:8 {DPPM}")
    for sw in ("16", "32"):
        a(f"v_mov_b32 v26, v24\nv_mov_b32 v27, v25\nv_permlane{sw}_swap_b32 v24, v26\nv_permlane{sw}_swap_b32 v25, v27\nv_max_f32 v24, v24, v26\nv_max_f32 v25, v25, v27")
    for i in range(4): a(f"v_sub_f32 v{W+4*i+2}, v{W+4*i+2}, v{24+i//2}")
    for i in range(4): a(f"v_exp_f32 v{W+4*i+2}, v{W+4*i+2}")
    for bb in range(2):
        r = W + 8*bb
        for e in (0, 1, 3): a(f"v_mul_f32 v{r+e}, v{r+e}, v{r+2}")
        for e in (0, 1, 3): a(f"v_fma_f32 v{r+e}, v{r+4+e}, v{r+6}, v{r+e}")
    for e in (0, 1, 3): a(f"v_add_f32_dpp v{W+e}, v{W+e}, v{W+e} row_ror:8 row_mask:0xf bank_mask:0x3")
    for e in (0, 1, 3): a(f"v_add_f32_dpp v{W+e}, v{W+8+e}, v{W+8+e} row_ror:8 row_mask:0xf bank_mask:0xc")
    a(f"v_mov_b32 v26, v{W+3}\nv_permlane16_swap_b32 v{W}, v{W+1}\nv_permlane16_swap_b32 v{W+3}, v26\nv_add_f32 v{W}, v{W}, v{W+1}\nv_add_f32 v{W+3}, v{W+3}, v26")
    a(f"v_mov_b32 v{W+1}, v{W}\nv_mov_b32 v26, v{W+3}\nv_permlane32_swap_b32 v{W}, v{W+1}\nv_permlane32_swap_b32 v{W+3}, v26\nv_add_f32 v{W}, v{W}, v{W+1}\nv_add_f32 v{W+3}, v{W+3}, v26")
    a(f"v_rcp_f32 v{W+3}, v{W+3}\nv_mul_f32 v{W}, v{W}, v{W+3}\nv_cvt_pk_bf16_f32 v{W}, v{W}, v{W}")
    for hi in range(2):
        for half in range(2):
            for n in range(4):
                a(f"v_mov_b32_dpp v{24+n}, v{W} row_newbcast:{8*half+2*n+hi} row_mask:{'0xc' if hi else '0x3'} bank_mask:{'0xc' if half else '0x3'}")
    mm640(WO, 24)
    ystore()
    a("s_cmp_lt_i32 s27, 0\ns_cbranch_scc1 L_aend\ns_barrier")
    a("L_aend:")
    stamp_out(a, P)
    a("s_endpgm")

def gen(fn, **P):
    P.setdefault("S", 12); P.setdefault("xbuf", 1); P.setdefault("qs0", 8); P.setdefault("n1", 64); P.setdefault("atc", 1); P.setdefault("osc", ""); P.setdefault("brk", 16); P.setdefault("pol", ("nt", "nt")); P.setdefault("prio", 0)
    a = Asm()
    a.raw(HDR.rstrip("\n"))
    a.raw(f"; @launch grid=(256,1,1) block=(320,1,1) lds=98304")
    a.raw('.amdgcn_target "amdgcn-amd-amdhsa--gfx950"\n.text')
    a.raw(f".globl {NAME}_kernel\n.p2align 8\n.type {NAME}_kernel,@function\n{NAME}_kernel:")
    a("s_cmp_ge_u32 s2, 256\ns_cbranch_scc1 L_exit")
    if P.get("stamps"):
        a("s_memrealtime s[76:77]")
        for i in range(78, 92): a(f"s_mov_b32 s{i}, 0")
    a("s_load_dwordx16 s[36:51], s[0:1], 0\ns_load_dwordx8 s[52:59], s[0:1], 64")
    a("v_lshrrev_b32 v1, 6, v0\nv_and_b32 v0, 63, v0\nv_readfirstlane_b32 s3, v1")
    a("s_lshr_b32 s4, s2, 3\ns_and_b32 s5, s2, 7\ns_sub_u32 s27, s2, 216")
    a("s_mov_b32 s26, 0xffff0000\ns_mov_b32 s72, s3")
    a("s_cmp_lg_u32 s3, 0\ns_cbranch_scc1 L_stream")
    aux(a, P)
    stream(a, P)
    a("L_exit:\ns_endpgm")
    a.raw(f""".section .rodata,"a"
.p2align 6
.amdhsa_kernel {NAME}_kernel
  .amdhsa_next_free_vgpr 256
  .amdhsa_next_free_sgpr 96
  .amdhsa_accum_offset 256
  .amdhsa_group_segment_fixed_size 0
  .amdhsa_kernarg_size 96
  .amdhsa_user_sgpr_count 2
  .amdhsa_user_sgpr_kernarg_segment_ptr 1
  .amdhsa_system_sgpr_workgroup_id_x 1
.end_amdhsa_kernel""")
    open(fn, "w").write(a.text())
    print(fn, "lines", len(a.lines), "padded", a.padded)
if __name__ == "__main__":
    B = dict(osc="sc0 sc1")
    gen("b_12_44.s", S=12, n1=44, **B); gen("b_11_60.s", S=11, n1=60, **B); gen("b_10_76.s", S=10, n1=76, **B); gen("b_8_108.s", S=8, n1=108, **B)
    gen("b_12_64.s", S=12, n1=64, **B); gen("b_12_32.s", S=12, n1=32, **B); gen("b_4_172.s", S=4, n1=172, **B); gen("b_11_60s.s", S=11, n1=60, stamps=1, **B)
```
